```python
import torch

def _softmax(x, axis=-1):
    return torch.softmax(x, dim=axis)
def _gelu(x):
    return torch.nn.functional.gelu(x, approximate="tanh")
def _silu(x):
    return torch.nn.functional.silu(x)
def _sigmoid(x):
    return torch.sigmoid(x)
def _layernorm(x, axis=-1, eps=1e-5):
    m = x.mean(dim=axis, keepdim=True)
    v = x.var(dim=axis, keepdim=True, unbiased=False)
    return (x - m) / torch.sqrt(v + eps)
def _scatter_add(tgt, idx, src, axis=0):
    return tgt.clone().index_add_(axis, idx, src)
def _segment_sum(src, seg, n):
    out = torch.zeros((n,) + src.shape[1:], dtype=src.dtype)
    return out.index_add_(0, seg, src)
def _pad(x, pw):
    flat = tuple(v for pair in reversed(pw) for v in pair)
    return torch.nn.functional.pad(x, flat)

kernel_name = 'sequential_preLN__linear_kernel_hedgehog__dense_activation_silu__prompt'

def setup_inputs():

    _w = (lambda a: (lambda t: t.to(torch.bfloat16) if t.is_floating_point() else t)(torch.as_tensor(a)))
    def _A_setup():
        B, S, D, H = 1, 2048, 640, 32
        Dh = D // H
        return {
            "x": _w((lambda *s: torch.randn(*s, dtype=torch.bfloat16) * 0.05)(B, S, D)),
            "wqkv": _w((lambda *s: torch.randn(*s, dtype=torch.bfloat16) * 0.2)(D, 3 * D)),
            "w_phi": _w((lambda *s: torch.randn(*s, dtype=torch.bfloat16) * 0.2)(H, Dh, Dh) * (Dh ** -0.5)),
            "wo": _w((lambda *s: torch.randn(*s, dtype=torch.bfloat16) * 0.05)(D, D)),
        }
    _A_in = _A_setup()

    def _B_setup():
        B, S, D, F = 1, 2048, 640, 1728
        return {
            "x": _w((lambda *s: torch.randn(*s, dtype=torch.bfloat16) * 0.05)(B, S, D)),
            "w1": _w((lambda *s: torch.randn(*s, dtype=torch.bfloat16) * 1.6)(D, F) * (D ** -0.5)),
            "w2": _w((lambda *s: torch.randn(*s, dtype=torch.bfloat16) * 0.2)(F, D) * (F ** -0.5)),
        }
    _B_in = _B_setup()

    return {
        "A_x": _A_in["x"],
        "A_wqkv": _A_in["wqkv"],
        "A_w_phi": _A_in["w_phi"],
        "A_wo": _A_in["wo"],
        "B_x": _B_in["x"],
        "B_w1": _B_in["w1"],
        "B_w2": _B_in["w2"],
    }

def reference(A_x, A_wqkv, A_w_phi, A_wo, B_x, B_w1, B_w2):
    def _A_ref(x, wqkv, w_phi, wo):
        B, S, D = x.shape
        H = 32; Dh = D // H
        qkv = (lambda x, *d: x.permute(*d))((x @ wqkv).reshape(B, S, 3, H, Dh), 2, 0, 3, 1, 4)
        q, k, v = qkv[0], qkv[1], qkv[2]
        pq = torch.einsum("bhsd,hdf->bhsf", q, w_phi)
        pk = torch.einsum("bhsd,hdf->bhsf", k, w_phi)
        phi_q = torch.concatenate([_softmax(pq, axis=-1), _softmax(-pq, axis=-1)], axis=-1)
        phi_k = torch.concatenate([_softmax(pk, axis=-1), _softmax(-pk, axis=-1)], axis=-1)
        kv = torch.einsum("bhsf,bhsd->bhfd", phi_k, v)
        z  = torch.einsum("bhsf->bhf", phi_k)
        num = torch.einsum("bhqf,bhfd->bhqd", phi_q, kv)
        den = torch.einsum("bhqf,bhf->bhq", phi_q, z)[..., None] + 1e-6
        o = num / den
        return (lambda x, *d: x.permute(*d))(o, 0, 2, 1, 3).reshape(B, S, D) @ wo

    def _B_ref(x, w1, w2):
        h = torch.einsum("bsd,df->bsf", x, w1)
        h = _silu(h)
        out = torch.einsum("bsf,fd->bsd", h, w2)
        return out

    x = A_x
    h = x + _A_ref(_layernorm(x, axis=-1), A_wqkv, A_w_phi, A_wo)
    h2 = h + _B_ref(_layernorm(h, axis=-1), B_w1, B_w2)
    return h2
```

```python
import re
class Asm:
    def __init__(self):
        self.lines = []
        self.lbl = 0
    def __call__(self, s):
        for ln in s.strip("\n").split("\n"):
            ln = ln.strip()
            if ln.startswith("buffer_") or ln.startswith("global_"):
                m = re.search(r"offset:(\d+)", ln)
                if m:
                    assert int(m.group(1)) < 4096, ln
            if ln.startswith("ds_"):
                m = re.search(r"offset:(\d+)", ln)
                if m:
                    assert int(m.group(1)) < 65536, ln
            self.lines.append("    " + ln)
    def label(self, name):
        self.lines.append(f"{name}:")
    def newlabel(self, base="L"):
        self.lbl += 1
        return f"{base}_{self.lbl}"
    def comment(self, s):
        self.lines.append("    ; " + s)
    def text(self):
        return "\n".join(self.lines) + "\n"

def magic_div(d, maxval):
    for sh in range(8, 32):
        m = (1 << sh) // d + 1
        if m >= (1 << 24):
            continue
        ok = all(((x * m) >> sh) == x // d for x in range(maxval + 1))
        if ok:
            return m, sh
    raise ValueError("no magic")

def vr(base, n=1):
    return f"v{base}" if n == 1 else f"v[{base}:{base+n-1}]"
def sr(base, n=1):
    return f"s{base}" if n == 1 else f"s[{base}:{base+n-1}]"
```

```python
import sys
from asmlib import *

WS_XN   = 0x0000000
WS_QKV  = 0x0300000
WS_PHIQ = 0x0B00000
WS_KV   = 0x1000000
WS_O    = 0x1100000
WS_H    = 0x1400000
WS_HN   = 0x1700000
WS_S    = 0x1A00000
ACT_BYTES = 2048*640*2

KA = dict(x=0, wqkv=8, wphi=16, wo=24, bx=32, w1=40, w2=48, out=56, dbg=64, ws=72)

kernels = []

def srd_from_ptr(a, sdst, sptr, nbytes):
    a(f"s_mov_b32 s{sdst}, s{sptr}")
    a(f"s_and_b32 s{sdst+1}, s{sptr+1}, 0xffff")
    a(f"s_mov_b32 s{sdst+2}, {nbytes}")
    a(f"s_mov_b32 s{sdst+3}, 0x00020000")

def srd_from_ws(a, sdst, sws, off, nbytes):
    a(f"s_add_u32 s{sdst}, s{sws}, {off}")
    a(f"s_addc_u32 s{sdst+1}, s{sws+1}, 0")
    a(f"s_and_b32 s{sdst+1}, s{sdst+1}, 0xffff")
    a(f"s_mov_b32 s{sdst+2}, {nbytes}")
    a(f"s_mov_b32 s{sdst+3}, 0x00020000")

def load_srd(a, sdst, src, nbytes, stmp):
    if src[0] == 'in':
        a(f"s_load_dwordx2 s[{stmp}:{stmp+1}], s[0:1], {KA[src[1]]}")
        a("s_waitcnt lgkmcnt(0)")
        srd_from_ptr(a, sdst, stmp, nbytes)
    else:
        a(f"s_load_dwordx2 s[{stmp}:{stmp+1}], s[0:1], {KA['ws']}")
        a("s_waitcnt lgkmcnt(0)")
        srd_from_ws(a, sdst, stmp, src[1], nbytes)

def wave_sum(a, v, vt, s0):
    for pat in ["quad_perm:[1,0,3,2]", "quad_perm:[2,3,0,1]", "row_half_mirror", "row_mirror"]:
        a("s_nop 1")
        a(f"v_add_f32_dpp v{v}, v{v}, v{v} {pat} row_mask:0xf bank_mask:0xf")
    a("s_nop 1")
    for i in range(4):
        a(f"v_readlane_b32 s{s0+i}, v{v}, {16*i}")
    a("s_nop 1")
    a(f"v_mov_b32 v{v}, s{s0}")
    a(f"v_add_f32 v{v}, s{s0+1}, v{v}")
    a(f"v_add_f32 v{v}, s{s0+2}, v{v}")
    a(f"v_add_f32 v{v}, s{s0+3}, v{v}")

def bf16_round(a, vdst, vsrc):
    a(f"v_cvt_pk_bf16_f32 v{vdst}, v{vsrc}, v{vsrc}")
    a(f"v_lshlrev_b32 v{vdst}, 16, v{vdst}")

def div_f32(a, vq, vn, vd, vt):
    a(f"v_rcp_f32 v{vt}, v{vd}")
    a("s_nop 0")
    a(f"v_mul_f32 v{vq}, v{vn}, v{vt}")
    a(f"v_fma_f32 v{vd+0}, -v{vq}, v{vd}, v{vn}") if False else None
    a(f"v_fma_f32 v{vt+1}, -v{vq}, v{vd}, v{vn}")
    a(f"v_fma_f32 v{vq}, v{vt+1}, v{vt}, v{vq}")

def gen_ln(name, src, dst, zero_kv):
    a = Asm()
    a("s_cmp_ge_u32 s2, 512")
    a(f"s_cbranch_scc1 {name}_end")
    load_srd(a, 8, src, ACT_BYTES, 4)
    load_srd(a, 12, dst, ACT_BYTES, 4)
    a("v_lshrrev_b32 v1, 6, v0")
    a("v_and_b32 v2, 63, v0")
    a("s_lshl_b32 s3, s2, 2")
    a("v_add_u32 v1, s3, v1")
    a("v_mul_u32_u24 v3, 0x500, v1")
    a("v_mul_u32_u24 v4, 20, v2")
    a("v_add_u32 v3, v3, v4")
    a("buffer_load_dwordx4 v[8:11], v3, s[8:11], 0 offen")
    a("buffer_load_dword v12, v3, s[8:11], 0 offen offset:16")
    if zero_kv:
        load_srd(a, 16, ('ws', WS_KV), 32*32*64*4, 4)
        a("s_lshl_b32 s20, s2, 8")
        a("v_add_u32 v5, s20, v0")
        a("v_lshlrev_b32 v5, 4, v5")
        a("v_mov_b32 v28, 0\nv_mov_b32 v29, 0\nv_mov_b32 v30, 0\nv_mov_b32 v31, 0")
        a("buffer_store_dwordx4 v[28:31], v5, s[16:19], 0 offen")
    a("s_waitcnt vmcnt(0)" if not zero_kv else "s_waitcnt vmcnt(1)")
    for k in range(5):
        a(f"v_lshlrev_b32 v{16+2*k}, 16, v{8+k}")
        a(f"v_and_b32 v{17+2*k}, 0xffff0000, v{8+k}")
    a("v_add_f32 v6, v16, v17")
    for k in range(2, 10):
        a(f"v_add_f32 v6, v6, v{16+k}")
    wave_sum(a, 6, 7, 20)
    a("v_mul_f32 v6, 0x3acccccd, v6")
    a("v_sub_f32 v7, v16, v6")
    a("v_mul_f32 v13, v7, v7")
    for k in range(1, 10):
        a(f"v_sub_f32 v7, v{16+k}, v6")
        a("v_fmac_f32 v13, v7, v7")
    wave_sum(a, 13, 7, 20)
    a("v_mul_f32 v13, 0x3acccccd, v13")
    bf16_round(a, 6, 6)
    bf16_round(a, 13, 13)
    a("v_add_f32 v13, 0x3727c5ac, v13")
    bf16_round(a, 13, 13)
    a("v_sqrt_f32 v13, v13")
    a("s_nop 0")
    bf16_round(a, 13, 13)
    a("v_rcp_f32 v14, v13")
    for k in range(10):
        a(f"v_sub_f32 v7, v{16+k}, v6")
        bf16_round(a, 7, 7)
        a(f"v_mul_f32 v{16+k}, v7, v14")
        a(f"v_fma_f32 v15, -v{16+k}, v13, v7")
        a(f"v_fma_f32 v{16+k}, v15, v14, v{16+k}")
    for k in range(5):
        a(f"v_cvt_pk_bf16_f32 v{8+k}, v{16+2*k}, v{17+2*k}")
    a("buffer_store_dwordx4 v[8:11], v3, s[12:15], 0 offen")
    a("buffer_store_dword v12, v3, s[12:15], 0 offen offset:16")
    a.label(f"{name}_end")
    a("s_endpgm")
    kernels.append((name, (512,1,1), (256,1,1), 0, 32, a.text()))

def gen_gemm(name, M, N, K, MT, NT, WGM, WGN, srcA, lda, srcB, ldb, dstC, ldc, epi, srcR=None, ldr=0):
    a = Asm()
    BK = 64
    NK = K // BK
    assert K % BK == 0
    WM, WN = MT // WGM, NT // WGN
    TM, TN = WM // 16, WN // 16
    ntm, ntn = M // MT, N // NT
    nwg = ntm * ntn
    ABUF = MT * 128
    SB = NT * 2
    if ((SB // 4) // 8) % 2 == 0:
        SB += 32
    BBUF = 64 * SB
    ABASE = 0
    BBASE = 2 * ABUF
    LDS = BBASE + 2 * BBUF
    NLA = MT * 8 // 256
    CPR = NT // 8
    NCH = 64 * CPR
    NLB = (NCH + 255) // 256
    nacc = TM * TN * 4
    XF = 64
    WF = XF + 2 * TM * 4
    SA = WF + 2 * TN * 4
    SBv = SA + NLA * 4
    endstage = SBv + NLB * 4
    ACC = (endstage + 3) // 4 * 4
    vAg = 2
    vBg = vAg + 4
    vAw = vBg + 4
    vBw = vAw + 1
    vXr = vBw + 4
    vWr = vXr + 2
    vC = vWr + 1
    vT = vC + 1
    assert vT + 16 <= XF

    a(f"s_cmp_ge_u32 s2, {nwg}")
    a(f"s_cbranch_scc1 {name}_end")
    load_srd(a, 8, srcA, M * lda, 4)
    load_srd(a, 12, srcB, K * ldb, 4)
    load_srd(a, 16, dstC, M * ldc, 4)
    if epi == 'residual':
        load_srd(a, 20, srcR, M * ldr, 4)
    m, sh = magic_div(ntn, nwg + 16)
    a(f"s_mul_i32 s24, s2, {m}")
    a(f"s_lshr_b32 s24, s24, {sh}")
    a(f"s_mul_i32 s25, s24, {ntn}")
    a("s_sub_u32 s25, s2, s25")
    a(f"s_mul_i32 s26, s24, {MT}")
    a(f"s_mul_i32 s27, s25, {NT}")
    a("v_and_b32 v1, 63, v0")
    a(f"v_lshrrev_b32 v{vT}, 3, v0")
    a(f"v_and_b32 v{vT+1}, 7, v0")
    a(f"v_add_u32 v{vT+2}, s26, v{vT}")
    a(f"s_mov_b32 s28, {lda}")
    a(f"v_mul_lo_u32 v{vT+2}, v{vT+2}, s28")
    a(f"v_lshlrev_b32 v{vT+3}, 4, v{vT+1}")
    a(f"v_add_u32 v{vAg}, v{vT+2}, v{vT+3}")
    for i in range(1, NLA):
        a(f"v_add_u32 v{vAg+i}, {i*32*lda}, v{vAg}")
    a(f"v_lshrrev_b32 v{vT+2}, 1, v{vT}")
    a(f"v_and_b32 v{vT+2}, 7, v{vT+2}")
    a(f"v_xor_b32 v{vT+2}, v{vT+2}, v{vT+1}")
    a(f"v_lshlrev_b32 v{vT+2}, 4, v{vT+2}")
    a(f"v_lshlrev_b32 v{vT+3}, 7, v{vT}")
    a(f"v_add_u32 v{vAw}, v{vT+2}, v{vT+3}")
    mdiv, sdiv = magic_div(CPR, 1024)
    a(f"s_mov_b32 s28, {ldb}")
    a(f"s_lshl_b32 s29, s27, 1")
    for i in range(NLB):
        a(f"v_add_u32 v{vT}, {256*i}, v0")
        if (i + 1) * 256 > NCH:
            a(f"v_subrev_u32 v{vT+1}, {(i+1)*256 - NCH}, v{vT}")
            a(f"v_cmp_gt_u32 vcc, {NCH}, v{vT}")
            a("s_nop 1")
            a(f"v_cndmask_b32 v{vT}, v{vT+1}, v{vT}, vcc")
        a(f"v_mul_u32_u24 v{vT+1}, {mdiv}, v{vT}")
        a(f"v_lshrrev_b32 v{vT+1}, {sdiv}, v{vT+1}")
        a(f"v_mul_u32_u24 v{vT+2}, {CPR}, v{vT+1}")
        a(f"v_sub_u32 v{vT+2}, v{vT}, v{vT+2}")
        a(f"v_mul_lo_u32 v{vT+3}, v{vT+1}, s28")
        a(f"v_lshlrev_b32 v{vT+4}, 4, v{vT+2}")
        a(f"v_add3_u32 v{vBg+i}, v{vT+3}, v{vT+4}, s29")
        a(f"v_and_b32 v{vT+3}, 0x23, v{vT+1}")
        a(f"v_and_b32 v{vT+5}, 16, v{vT+1}")
        a(f"v_or_b32 v{vT+3}, v{vT+3}, v{vT+5}")
        a(f"v_and_b32 v{vT+5}, 4, v{vT+1}")
        a(f"v_lshlrev_b32 v{vT+5}, 1, v{vT+5}")
        a(f"v_or_b32 v{vT+3}, v{vT+3}, v{vT+5}")
        a(f"v_and_b32 v{vT+5}, 8, v{vT+1}")
        a(f"v_lshrrev_b32 v{vT+5}, 1, v{vT+5}")
        a(f"v_or_b32 v{vT+3}, v{vT+3}, v{vT+5}")
        a(f"v_mul_u32_u24 v{vT+3}, {SB}, v{vT+3}")
        a(f"v_add_u32 v{vBw+i}, v{vT+3}, v{vT+4}")
    a(f"v_lshrrev_b32 v{vT}, 6, v0")
    a("s_nop 0")
    a(f"v_readfirstlane_b32 s30, v{vT}")
    a("s_nop 1")
    if WGN == 1:
        a("s_mov_b32 s31, s30")
        a("s_mov_b32 s32, 0")
    else:
        a("s_lshr_b32 s31, s30, 1")
        a("s_and_b32 s32, s30, 1")
    a(f"s_mul_i32 s31, s31, {WM}")
    a(f"s_mul_i32 s32, s32, {WN}")
    a(f"v_and_b32 v{vT}, 15, v1")
    a(f"v_lshrrev_b32 v{vT+1}, 4, v1")
    a(f"v_lshrrev_b32 v{vT+2}, 1, v1")
    a(f"v_and_b32 v{vT+2}, 7, v{vT+2}")
    a(f"v_xor_b32 v{vT+2}, v{vT+2}, v{vT+1}")
    a(f"v_lshlrev_b32 v{vT+2}, 4, v{vT+2}")
    a(f"v_add_u32 v{vT+3}, s31, v{vT}")
    a(f"v_lshlrev_b32 v{vT+3}, 7, v{vT+3}")
    a(f"v_add_u32 v{vXr}, v{vT+3}, v{vT+2}")
    a(f"v_xor_b32 v{vXr+1}, 64, v{vXr}")
    a(f"v_lshrrev_b32 v{vT+2}, 2, v{vT}")
    a(f"v_and_b32 v{vT+3}, 1, v{vT+1}")
    a(f"v_lshlrev_b32 v{vT+3}, 2, v{vT+3}")
    a(f"v_add_u32 v{vT+2}, v{vT+2}, v{vT+3}")
    a(f"v_lshrrev_b32 v{vT+3}, 1, v{vT+1}")
    a(f"v_lshlrev_b32 v{vT+3}, 4, v{vT+3}")
    a(f"v_add_u32 v{vT+2}, v{vT+2}, v{vT+3}")
    a(f"v_mul_u32_u24 v{vT+2}, {SB}, v{vT+2}")
    a(f"v_and_b32 v{vT+3}, 3, v1")
    a(f"v_lshlrev_b32 v{vT+3}, 3, v{vT+3}")
    a(f"s_lshl_b32 s33, s32, 1")
    a(f"v_add3_u32 v{vWr}, v{vT+2}, v{vT+3}, s33")
    a(f"s_add_u32 s34, s26, s31")
    a(f"s_add_u32 s35, s27, s32")
    a(f"v_add_u32 v{vT+2}, s34, v{vT}")
    a(f"s_mov_b32 s28, {ldc}")
    a(f"v_mul_lo_u32 v{vT+2}, v{vT+2}, s28")
    a(f"v_lshlrev_b32 v{vT+3}, 2, v{vT+1}")
    a(f"v_add_u32 v{vT+3}, s35, v{vT+3}")
    a(f"v_lshlrev_b32 v{vT+3}, 1, v{vT+3}")
    a(f"v_add_u32 v{vC}, v{vT+2}, v{vT+3}")
    for i in range(nacc):
        a(f"v_mov_b32 v{ACC+i}, 0")
    def gload(kc):
        for i in range(NLA):
            a(f"buffer_load_dwordx4 v[{SA+4*i}:{SA+4*i+3}], v{vAg+i}, s[8:11], 0 offen offset:{kc*128}")
        a(f"s_mov_b32 s36, {kc*64*ldb}")
        for i in range(NLB):
            a(f"buffer_load_dwordx4 v[{SBv+4*i}:{SBv+4*i+3}], v{vBg+i}, s[12:15], s36 offen")
    def lwrite(buf):
        for i in range(NLA):
            a(f"ds_write_b128 v{vAw}, v[{SA+4*i}:{SA+4*i+3}] offset:{ABASE + buf*ABUF + i*4096}")
        for i in range(NLB):
            a(f"ds_write_b128 v{vBw+i}, v[{SBv+4*i}:{SBv+4*i+3}] offset:{BBASE + buf*BBUF}")
    gload(0)
    a("s_waitcnt vmcnt(0)")
    lwrite(0)
    a("s_waitcnt lgkmcnt(0)")
    a("s_barrier")
    for kc in range(NK):
        buf = kc & 1
        if kc + 1 < NK:
            gload(kc + 1)
        nrd = TM + 2 * TN
        for ks in range(2):
            for mt in range(TM):
                r = XF + (ks * TM + mt) * 4
                a(f"ds_read_b128 v[{r}:{r+3}], v{vXr+ks} offset:{ABASE + buf*ABUF + mt*2048}")
            for nt in range(TN):
                for jh in range(2):
                    r = WF + (ks * TN + nt) * 4 + jh * 2
                    a(f"ds_read_b64_tr_b16 v[{r}:{r+1}], v{vWr} offset:{BBASE + buf*BBUF + (32*ks + 8*jh)*SB + nt*32}")
        for ks in range(2):
            a(f"s_waitcnt lgkmcnt({nrd if ks == 0 else 0})")
            for mt in range(TM):
                for nt in range(TN):
                    xa = XF + (ks * TM + mt) * 4
                    wa = WF + (ks * TN + nt) * 4
                    c = ACC + (mt * TN + nt) * 4
                    a(f"v_mfma_f32_16x16x32_bf16 v[{c}:{c+3}], v[{wa}:{wa+3}], v[{xa}:{xa+3}], v[{c}:{c+3}]")
        if kc + 1 < NK:
            a("s_waitcnt vmcnt(0)")
            lwrite(buf ^ 1)
            a("s_waitcnt lgkmcnt(0)")
            a("s_barrier")
    a("s_nop 15")
    for mt in range(TM):
        a(f"v_add_u32 v{vT}, {mt*16*ldc}, v{vC}")
        if epi == 'residual':
            for nt in range(TN):
                a(f"buffer_load_dwordx2 v[{XF+2*nt}:{XF+2*nt+1}], v{vT}, s[20:23], 0 offen offset:{nt*32}")
            a("s_waitcnt vmcnt(0)")
        for nt in range(TN):
            c = ACC + (mt * TN + nt) * 4
            if epi == 'store':
                a(f"v_cvt_pk_bf16_f32 v{c}, v{c}, v{c+1}")
                a(f"v_cvt_pk_bf16_f32 v{c+1}, v{c+2}, v{c+3}")
            elif epi == 'residual':
                for i in range(4):
                    bf16_round(a, c + i, c + i)
                r = XF + 2 * nt
                a(f"v_lshlrev_b32 v{vT+1}, 16, v{r}")
                a(f"v_and_b32 v{vT+2}, 0xffff0000, v{r}")
                a(f"v_lshlrev_b32 v{vT+3}, 16, v{r+1}")
                a(f"v_and_b32 v{vT+4}, 0xffff0000, v{r+1}")
                for i in range(4):
                    a(f"v_add_f32 v{c+i}, v{c+i}, v{vT+1+i}")
                a(f"v_cvt_pk_bf16_f32 v{c}, v{c}, v{c+1}")
                a(f"v_cvt_pk_bf16_f32 v{c+1}, v{c+2}, v{c+3}")
            elif epi == 'silu':
                for i in range(4):
                    bf16_round(a, c + i, c + i)
                    a(f"v_mul_f32 v{vT+1+i}, 0xbfb8aa3b, v{c+i}")
                for i in range(4):
                    a(f"v_exp_f32 v{vT+1+i}, v{vT+1+i}")
                a("s_nop 0")
                for i in range(4):
                    a(f"v_add_f32 v{vT+1+i}, 1.0, v{vT+1+i}")
                for i in range(4):
                    a(f"v_rcp_f32 v{vT+1+i}, v{vT+1+i}")
                a("s_nop 0")
                for i in range(4):
                    a(f"v_mul_f32 v{c+i}, v{c+i}, v{vT+1+i}")
                a(f"v_cvt_pk_bf16_f32 v{c}, v{c}, v{c+1}")
                a(f"v_cvt_pk_bf16_f32 v{c+1}, v{c+2}, v{c+3}")
            a(f"buffer_store_dwordx2 v[{c}:{c+1}], v{vT}, s[16:19], 0 offen offset:{nt*32}")
    a.label(f"{name}_end")
    a("s_endpgm")
    kernels.append((name, (nwg,1,1), (256,1,1), LDS, ACC + nacc, a.text()))

def emit(path):
    out = []
    for (name, grid, block, lds, nv, text) in kernels:
        out.append(f"; @launch kernel={name} grid=({grid[0]},{grid[1]},{grid[2]}) block=({block[0]},{block[1]},{block[2]}) lds={lds}")
    out.append('.amdgcn_target "amdgcn-amd-amdhsa--gfx950"')
    out.append(".text")
    for (name, grid, block, lds, nv, text) in kernels:
        out += [f".globl {name}", ".p2align 8", f".type {name},@function", f"{name}:", text]
    out.append('.section .rodata,"a"')
    for (name, grid, block, lds, nv, text) in kernels:
        nv4 = (nv + 3) // 4 * 4
        out += [".p2align 6", f".amdhsa_kernel {name}", f"  .amdhsa_next_free_vgpr {nv4}", "  .amdhsa_next_free_sgpr 96",
                f"  .amdhsa_accum_offset {nv4}", "  .amdhsa_group_segment_fixed_size 0", "  .amdhsa_kernarg_size 80",
                "  .amdhsa_user_sgpr_count 2", "  .amdhsa_user_sgpr_kernarg_segment_ptr 1",
                "  .amdhsa_system_sgpr_workgroup_id_x 1", ".end_amdhsa_kernel"]
    open(path, "w").write("\n".join(out) + "\n")

if __name__ == "__main__":
    gen_ln("ln1_kernel", ('in', 'x'), ('ws', WS_XN), True)
    gen_gemm("qkv_kernel", 2048, 1920, 640, 128, 128, 2, 2, ('ws', WS_XN), 1280, ('in', 'wqkv'), 3840, ('ws', WS_QKV), 3840, 'store')
    emit(sys.argv[1] if len(sys.argv) > 1 else "v1.s")
```

```python
import sys
from asmlib import *
from gen1 import *

LOG2E = 0x3fb8aa3b

def gen_feat(name):
    a = Asm()
    TS = 256; PS = 176; KS = 160
    WP0 = 0
    T0 = 4096
    PQ0 = T0 + 128 * TS + 64
    PK0 = PQ0 + 128 * PS + 64
    LDS = PK0 + 128 * KS + 256
    a("s_cmp_ge_u32 s2, 256")
    a(f"s_cbranch_scc1 {name}_end")
    load_srd(a, 8, ('ws', WS_QKV), 2048 * 3840, 4)
    load_srd(a, 12, ('in', 'wphi'), 32 * 800, 4)
    load_srd(a, 16, ('ws', WS_PHIQ), 2048 * 2560, 4)
    load_srd(a, 20, ('ws', WS_KV), 32 * 32 * 64 * 4, 4)
    a("s_lshr_b32 s24, s2, 4")
    a("s_and_b32 s25, s2, 15")
    a("s_lshl_b32 s26, s24, 7")
    a("v_and_b32 v1, 63, v0")
    a("v_lshlrev_b32 v2, 4, v0")
    a("v_mov_b32 v4, 0\nv_mov_b32 v5, 0\nv_mov_b32 v6, 0\nv_mov_b32 v7, 0")
    a(f"ds_write_b128 v2, v[4:7] offset:{WP0}")
    m15, s15 = magic_div(15, 2100)
    m5, s5 = magic_div(5, 20)
    a("s_mul_i32 s27, s26, 3840")
    a("s_mul_i32 s28, s25, 80")
    a("s_add_u32 s27, s27, s28")
    for i in range(8):
        a(f"v_add_u32 v2, {256*i}, v0")
        a(f"v_mul_u32_u24 v3, {m15}, v2")
        a(f"v_lshrrev_b32 v3, {s15}, v3")
        a("v_mul_u32_u24 v4, 15, v3")
        a("v_sub_u32 v4, v2, v4")
        a(f"v_mul_u32_u24 v5, {m5}, v4")
        a(f"v_lshrrev_b32 v5, {s5}, v5")
        a("v_mul_u32_u24 v6, 5, v5")
        a("v_sub_u32 v6, v4, v6")
        a("v_mul_u32_u24 v7, 3840, v3")
        a("v_mul_u32_u24 v5, 1280, v5")
        a("v_lshlrev_b32 v6, 4, v6")
        a("v_add3_u32 v7, v7, v5, v6")
        a(f"v_lshlrev_b32 v8, 8, v3")
        a(f"v_lshl_add_u32 v{16+i}, v4, 4, v8")
        a(f"buffer_load_dwordx4 v[{32+4*i}:{32+4*i+3}], v7, s[8:11], s27 offen")
    a("s_waitcnt vmcnt(0)")
    for i in range(8):
        if i == 7:
            a("v_cmp_gt_u32 vcc, 128, v0")
            a("s_and_saveexec_b64 s[30:31], vcc")
        a(f"ds_write_b128 v{16+i}, v[{32+4*i}:{32+4*i+3}] offset:{T0}")
        if i == 7:
            a("s_mov_b64 exec, s[30:31]")
    a("s_waitcnt lgkmcnt(0)")
    a("s_barrier")
    m20, s20 = magic_div(20, 600)
    a("s_mul_i32 s28, s25, 1600")
    for hh in range(2):
        for i in range(2):
            a(f"v_add_u32 v2, {256*i}, v0")
            a("v_lshlrev_b32 v3, 1, v2")
            a(f"buffer_load_ushort v{8+2*hh+i}, v3, s[12:15], s28 offen offset:{hh*800}")
    a("s_waitcnt vmcnt(0)")
    for hh in range(2):
        for i in range(2):
            a(f"v_add_u32 v2, {256*i}, v0")
            a(f"v_mul_u32_u24 v3, {m20}, v2")
            a(f"v_lshrrev_b32 v3, {s20}, v3")
            a("v_mul_u32_u24 v4, 20, v3")
            a("v_sub_u32 v4, v2, v4")
            a("v_lshlrev_b32 v3, 6, v3")
            a("v_lshl_add_u32 v3, v4, 1, v3")
            a("v_cmp_gt_u32 vcc, 400, v2")
            a("s_and_saveexec_b64 s[30:31], vcc")
            a(f"ds_write_b16 v3, v{8+2*hh+i} offset:{WP0 + hh*2048}")
            a("s_mov_b64 exec, s[30:31]")
    a("s_waitcnt lgkmcnt(0)")
    a("s_barrier")
    a("v_and_b32 v2, 15, v1")
    a("v_lshrrev_b32 v3, 4, v1")
    a("v_lshrrev_b32 v4, 2, v2")
    a("v_and_b32 v5, 3, v1")
    a("v_lshrrev_b32 v6, 6, v0")
    a("s_nop 0")
    a("v_readfirstlane_b32 s32, v6")
    a("v_lshl_add_u32 v7, v3, 3, v4")
    a("v_lshlrev_b32 v7, 6, v7")
    a("v_lshl_add_u32 v7, v5, 3, v7")
    for hh in range(2):
        for mt in range(2):
            for jh in range(2):
                r = 64 + (hh * 2 + mt) * 4 + jh * 2
                a(f"ds_read_b64_tr_b16 v[{r}:{r+1}], v7 offset:{WP0 + hh*2048 + jh*256 + mt*32}")
    a("s_lshl_b32 s33, s32, 5")
    a("v_add_u32 v8, s33, v2")
    a(f"v_mul_u32_u24 v9, {TS}, v8")
    a("v_lshl_add_u32 v9, v3, 4, v9")
    a(f"v_mul_u32_u24 v10, {PS}, v8")
    a("v_lshl_add_u32 v10, v3, 3, v10")
    a("v_cmp_gt_u32 s[34:35], 16, v1")
    for rt in range(2):
        for sec in range(2):
            for hh in range(2):
                off = T0 + rt * 16 * TS + (sec * 40 + 20 * hh) * 2
                a(f"ds_read_b64 v[80:81], v9 offset:{off}")
                a(f"ds_read_b64 v[82:83], v9 offset:{off+8}")
                a("s_waitcnt lgkmcnt(0)")
                for mt in range(2):
                    wa = 64 + (hh * 2 + mt) * 4
                    a(f"v_mfma_f32_16x16x32_bf16 v[{84+4*mt}:{87+4*mt}], v[{wa}:{wa+3}], v[80:83], 0")
                a("s_nop 7")
                for mt in range(2):
                    c = 84 + 4 * mt
                    a(f"v_cvt_pk_bf16_f32 v{c}, v{c}, v{c+1}")
                    a(f"v_cvt_pk_bf16_f32 v{c+1}, v{c+2}, v{c+3}")
                    woff = PQ0 + rt * 16 * PS + (sec * 40 + 20 * hh + 16 * mt) * 2
                    if mt == 1:
                        a("s_and_saveexec_b64 s[30:31], s[34:35]")
                    a(f"ds_write_b64 v10, v[{c}:{c+1}] offset:{woff}")
                    if mt == 1:
                        a("s_mov_b64 exec, s[30:31]")
    a("s_waitcnt lgkmcnt(0)")
    a("s_barrier")
    a("v_lshrrev_b32 v8, 1, v0")
    a("v_and_b32 v9, 1, v0")
    a(f"v_mul_u32_u24 v10, {PS}, v8")
    a("v_mul_u32_u24 v11, 40, v9")
    a("v_add_u32 v10, v10, v11")
    a(f"v_mul_u32_u24 v12, {KS}, v8")
    a("v_mul_u32_u24 v13, 80, v9")
    a("v_add_u32 v12, v12, v13")
    a(f"v_add_u32 v12, {PK0}, v12")
    a("v_add_u32 v14, s26, v8")
    a("v_mul_u32_u24 v14, 2560, v14")
    a("s_mul_i32 s28, s25, 160")
    a("v_add3_u32 v14, v14, v13, s28")
    for sec in range(2):
        for k in range(5):
            a(f"ds_read_b64 v[{16+2*k}:{17+2*k}], v10 offset:{PQ0 + sec*80 + 8*k}")
        a("s_waitcnt lgkmcnt(0)")
        for k in range(10):
            a(f"v_and_b32 v{33+2*k}, 0xffff0000, v{16+k}")
            a(f"v_lshlrev_b32 v{32+2*k}, 16, v{16+k}")
        a("v_max_f32 v28, v32, v33")
        a("v_min_f32 v29, v32, v33")
        for k in range(2, 20):
            a(f"v_max_f32 v28, v28, v{32+k}")
            a(f"v_min_f32 v29, v29, v{32+k}")
        a(f"s_mov_b32 s36, {LOG2E}")
        for k in range(20):
            a(f"v_sub_f32 v{52+k}, v{32+k}, v28")
            a(f"v_sub_f32 v{72+k}, v29, v{32+k}")
        for k in range(20):
            a(f"v_mul_f32 v{52+k}, s36, v{52+k}")
            a(f"v_mul_f32 v{72+k}, s36, v{72+k}")
        for k in range(20):
            a(f"v_exp_f32 v{52+k}, v{52+k}")
            a(f"v_exp_f32 v{72+k}, v{72+k}")
        a("s_nop 0")
        a("v_add_f32 v28, v52, v53")
        a("v_add_f32 v29, v72, v73")
        for k in range(2, 20):
            a(f"v_add_f32 v28, v28, v{52+k}")
            a(f"v_add_f32 v29, v29, v{72+k}")
        a("v_rcp_f32 v30, v28")
        a("v_rcp_f32 v31, v29")
        a("s_nop 0")
        for k in range(20):
            a(f"v_mul_f32 v15, v{52+k}, v30")
            a(f"v_fma_f32 v{52+k}, -v15, v28, v{52+k}")
            a(f"v_fma_f32 v{52+k}, v{52+k}, v30, v15")
            a(f"v_mul_f32 v15, v{72+k}, v31")
            a(f"v_fma_f32 v{72+k}, -v15, v29, v{72+k}")
            a(f"v_fma_f32 v{72+k}, v{72+k}, v31, v15")
        for k in range(20):
            src = 52 + 2 * k if k < 10 else 72 + 2 * (k - 10)
            a(f"v_cvt_pk_bf16_f32 v{16+k}, v{src}, v{src+1}")
        for k in range(5):
            if sec == 0:
                a(f"buffer_store_dwordx4 v[{16+4*k}:{19+4*k}], v14, s[16:19], 0 offen offset:{16*k}")
            else:
                a(f"ds_write_b128 v12, v[{16+4*k}:{19+4*k}] offset:{16*k}")
        a("s_nop 1")
    a("s_waitcnt lgkmcnt(0)")
    a("s_barrier")
    a("s_and_b32 s33, s32, 1")
    a("s_lshr_b32 s34, s32, 1")
    a("v_lshl_add_u32 v8, v3, 3, v4")
    a(f"v_mul_u32_u24 v9, {TS}, v8")
    a("v_lshl_add_u32 v9, v5, 3, v9")
    a("s_mul_i32 s35, s33, 40")
    a("s_lshl_b32 s36, s34, 5")
    a("s_add_u32 s35, s35, s36")
    a("v_add_u32 v9, s35, v9")
    a(f"v_mul_u32_u24 v10, {KS}, v8")
    a("v_lshl_add_u32 v10, v5, 3, v10")
    a("s_mul_i32 s35, s33, 80")
    a(f"s_add_u32 s35, s35, {PK0}")
    a("v_add_u32 v10, s35, v10")
    a("v_cmp_le_u32 s[36:37], 4, v2")
    a("s_cmp_eq_u32 s34, 1")
    a("s_cselect_b64 s[36:37], s[36:37], 0")
    a("v_mov_b32 v11, 0x3f803f80")
    for nt in range(3):
        for i in range(4):
            a(f"v_mov_b32 v{96+4*nt+i}, 0")
    for ks in range(4):
        for jh in range(2):
            a(f"ds_read_b64_tr_b16 v[{64+2*jh}:{65+2*jh}], v9 offset:{T0 + 160 + (32*ks + 4*jh)*TS}")
        for nt in range(3):
            for jh in range(2):
                a(f"ds_read_b64_tr_b16 v[{68+4*nt+2*jh}:{69+4*nt+2*jh}], v10 offset:{(32*ks+4*jh)*KS + nt*32}")
        a("s_waitcnt lgkmcnt(0)")
        for i in range(4):
            a(f"v_cndmask_b32 v{64+i}, v{64+i}, v11, s[36:37]")
        a("s_nop 1")
        for nt in range(3):
            a(f"v_mfma_f32_16x16x32_bf16 v[{96+4*nt}:{99+4*nt}], v[64:67], v[{68+4*nt}:{71+4*nt}], v[{96+4*nt}:{99+4*nt}]")
    a("s_nop 15")
    a("s_lshl_b32 s35, s25, 1")
    a("s_add_u32 s35, s35, s33")
    a("s_lshl_b32 s35, s35, 5")
    a("s_lshl_b32 s36, s34, 4")
    a("s_add_u32 s35, s35, s36")
    a("v_lshlrev_b32 v12, 2, v3")
    a("v_add_u32 v12, s35, v12")
    a("v_lshlrev_b32 v12, 8, v12")
    a("v_lshl_add_u32 v12, v2, 2, v12")
    a("v_cmp_gt_u32 s[40:41], 8, v2")
    a("v_cmp_eq_u32 s[42:43], 0, v3")
    a("v_cmp_gt_u32 s[44:45], 2, v3")
    a("s_cmp_eq_u32 s34, 0")
    a("s_cselect_b64 s[42:43], -1, s[42:43]")
    a("s_cselect_b64 s[44:45], -1, s[44:45]")
    a("s_mov_b64 s[30:31], exec")
    for nt in range(3):
        for i in range(4):
            src = "s[44:45]" if i == 0 else "s[42:43]"
            if nt == 2:
                a(f"s_and_b64 exec, {src}, s[40:41]")
            else:
                a(f"s_mov_b64 exec, {src}")
            a(f"buffer_atomic_add_f32 v{96+4*nt+i}, v12, s[20:23], 0 offen offset:{i*256 + nt*64}")
    a("s_mov_b64 exec, s[30:31]")
    a.label(f"{name}_end")
    a("s_endpgm")
    kernels.append((name, (256,1,1), (256,1,1), LDS, 112, a.text()))

def gen_o(name):
    a = Asm()
    a("s_cmp_ge_u32 s2, 32")
    a(f"s_cbranch_scc1 {name}_end")
    load_srd(a, 8, ('ws', WS_PHIQ), 2048 * 2560, 4)
    load_srd(a, 12, ('ws', WS_KV), 32 * 32 * 64 * 4, 4)
    load_srd(a, 16, ('ws', WS_O), ACT_BYTES, 4)
    a("s_lshl_b32 s24, s2, 6")
    a("v_and_b32 v1, 63, v0")
    a("v_and_b32 v2, 15, v1")
    a("v_lshrrev_b32 v3, 4, v1")
    a("v_lshrrev_b32 v6, 6, v0")
    a("s_nop 0")
    a("v_readfirstlane_b32 s32, v6")
    a("v_lshlrev_b32 v7, 8, v2")
    a("v_lshl_add_u32 v7, v3, 5, v7")
    a("v_lshlrev_b32 v8, 5, v3")
    a("v_add_u32 v8, 5120, v8")
    a("v_add_u32 v12, 4096, v7")
    a("v_add_u32 v9, s24, v2")
    a("v_mul_u32_u24 v9, 2560, v9")
    a("v_lshl_add_u32 v9, v3, 4, v9")
    a("v_add_u32 v10, s24, v2")
    a("v_mul_u32_u24 v10, 1280, v10")
    a("v_lshl_add_u32 v10, v3, 3, v10")
    a("v_cmp_gt_u32 s[34:35], 16, v1")
    for hi in range(8):
        a(f"s_lshl_b32 s25, s32, 3")
        a(f"s_add_u32 s25, s25, {hi}")
        a("s_lshl_b32 s26, s25, 13")
        a("s_mul_i32 s27, s25, 80")
        a("s_mul_i32 s28, s25, 40")
        for mt in range(2):
            for ks in range(2):
                for q in range(2):
                    r = 16 + ((mt * 2 + ks) * 2 + q) * 4
                    a(f"buffer_load_dwordx4 v[{r}:{r+3}], v{7 if mt == 0 else 12}, s[12:15], s26 offen offset:{ks*128 + q*16}")
        for ks in range(2):
            for q in range(2):
                r = 48 + (ks * 2 + q) * 4
                a(f"buffer_load_dwordx4 v[{r}:{r+3}], v8, s[12:15], s26 offen offset:{ks*128 + q*16}")
        for rt in range(4):
            for ks in range(2):
                r = 64 + (rt * 2 + ks) * 4
                a(f"v_add_u32 v11, {rt*16*2560}, v9")
                a(f"buffer_load_dwordx4 v[{r}:{r+3}], v11, s[8:11], s27 offen offset:{ks*64}")
        a("s_waitcnt vmcnt(0)")
        for mt in range(2):
            for ks in range(2):
                for j in range(4):
                    s0 = 16 + ((mt * 2 + ks) * 2) * 4 + 2 * j
                    a(f"v_cvt_pk_bf16_f32 v{96+(mt*2+ks)*4+j}, v{s0}, v{s0+1}")
        for ks in range(2):
            for j in range(4):
                s0 = 48 + (ks * 2) * 4 + 2 * j
                a(f"v_cvt_pk_bf16_f32 v{112+ks*4+j}, v{s0}, v{s0+1}")
        a("s_nop 1")
        for rt in range(4):
            for mt in range(2):
                for ks in range(2):
                    b = 64 + (rt * 2 + ks) * 4
                    c = 120 + mt * 4
                    srcc = "0" if ks == 0 else f"v[{c}:{c+3}]"
                    a(f"v_mfma_f32_16x16x32_bf16 v[{c}:{c+3}], v[{96+(mt*2+ks)*4}:{99+(mt*2+ks)*4}], v[{b}:{b+3}], {srcc}")
            for ks in range(2):
                b = 64 + (rt * 2 + ks) * 4
                srcc = "0" if ks == 0 else "v[128:131]"
                a(f"v_mfma_f32_16x16x32_bf16 v[128:131], v[{112+ks*4}:{115+ks*4}], v[{b}:{b+3}], {srcc}")
            a("s_nop 7")
            bf16_round(a, 132, 128)
            a("v_add_f32 v132, 0x358637bd, v132")
            bf16_round(a, 132, 132)
            a("v_rcp_f32 v133, v132")
            a(f"v_add_u32 v11, {rt*16*1280}, v10")
            for mt in range(2):
                c = 120 + mt * 4
                for i in range(4):
                    bf16_round(a, c + i, c + i)
                    a(f"v_mul_f32 v134, v{c+i}, v133")
                    a(f"v_fma_f32 v{c+i}, -v134, v132, v{c+i}")
                    a(f"v_fma_f32 v{c+i}, v{c+i}, v133, v134")
                a(f"v_cvt_pk_bf16_f32 v{c}, v{c}, v{c+1}")
                a(f"v_cvt_pk_bf16_f32 v{c+1}, v{c+2}, v{c+3}")
                if mt == 1:
                    a("s_and_saveexec_b64 s[30:31], s[34:35]")
                a(f"buffer_store_dwordx2 v[{c}:{c+1}], v11, s[16:19], s28 offen offset:{mt*32}")
                if mt == 1:
                    a("s_mov_b64 exec, s[30:31]")
    a.label(f"{name}_end")
    a("s_endpgm")
    kernels.append((name, (32,1,1), (256,1,1), 0, 136, a.text()))

if __name__ == "__main__":
    gen_ln("ln1_kernel", ('in', 'x'), ('ws', WS_XN), True)
    gen_gemm("qkv_kernel", 2048, 1920, 640, 128, 128, 2, 2, ('ws', WS_XN), 1280, ('in', 'wqkv'), 3840, ('ws', WS_QKV), 3840, 'store')
    gen_feat("feat_kernel")
    gen_o("o_kernel")
    gen_gemm("wo_kernel", 2048, 640, 640, 64, 80, 4, 1, ('ws', WS_O), 1280, ('in', 'wo'), 1280, ('ws', WS_H), 1280, 'residual', ('in', 'x'), 1280)
    gen_ln("ln2_kernel", ('ws', WS_H), ('ws', WS_HN), False)
    gen_gemm("w1_kernel", 2048, 1728, 640, 128, 96, 2, 2, ('ws', WS_HN), 1280, ('in', 'w1'), 3456, ('ws', WS_S), 3456, 'silu')
    gen_gemm("w2_kernel", 2048, 640, 1728, 64, 80, 4, 1, ('ws', WS_S), 3456, ('in', 'w2'), 1280, ('in', 'out'), 1280, 'residual', ('ws', WS_H), 1280)
    emit(sys.argv[1] if len(sys.argv) > 1 else "v1.s")
```

```python
import sys
from asmlib import *
from gen1 import *

class Gemm:
    def __init__(self, a, M, N, K, MT, NT, WGM, WGN, lda, ldb, S, lds_base=0, gatherB=False, a_in_lds=None):
        self.a = a
        self.M, self.N, self.K, self.MT, self.NT = M, N, K, MT, NT
        self.WGM, self.WGN = WGM, WGN
        self.WM, self.WN = MT // WGM, NT // WGN
        self.TM, self.TN = self.WM // 16, self.WN // 16
        self.lda, self.ldb, self.S = lda, ldb, S
        self.NK = K // 64
        self.gatherB = gatherB
        self.a_in_lds = a_in_lds
        self.ABUF = MT * 128 if a_in_lds is None else 0
        self.RB = NT * 2
        self.BBUF = 64 * self.RB
        self.STAGE = self.ABUF + self.BBUF
        self.lds_base = lds_base
        self.lds_end = lds_base + S * self.STAGE
        self.NJA = MT // 32 if a_in_lds is None else 0
        nb = (self.BBUF // 1024)
        self.NJB = (nb + 3) // 4
        self.D = self.NJA + self.NJB
        self.vAo = 2
        self.vBo = 3
        self.vXr = 7
        self.vWr = 9
        self.vC = 13
        self.vT = 14
        self.XF = 32
        self.WF = self.XF + 2 * self.TM * 4
        self.ACC = self.WF + 2 * self.TN * 4
        self.nacc = self.TM * self.TN * 4
        self.vend = self.ACC + self.nacc
    def tile_coords(self, xcd_map=None):
        a = self.a
        ntn = self.N // self.NT if self.N % self.NT == 0 else self.N // self.NT + 1
        self.ntn = ntn
        if xcd_map is None:
            m, sh = magic_div(ntn, 4096)
            a(f"s_mul_i32 s24, s2, {m}")
            a(f"s_lshr_b32 s24, s24, {sh}")
            a(f"s_mul_i32 s25, s24, {ntn}")
            a("s_sub_u32 s25, s2, s25")
        else:
            xcd_map(a)
        a(f"s_mul_i32 s24, s24, {self.MT}")
        a(f"s_mul_i32 s25, s25, {self.NT}")
    def setup(self, hp_sgpr=None):
        a = self.a
        T = self.vT
        a("v_and_b32 v1, 63, v0")
        a(f"v_lshrrev_b32 v{T}, 6, v0")
        a("s_nop 0")
        a(f"v_readfirstlane_b32 s26, v{T}")
        a("s_nop 1")
        if self.WGN == 1:
            a(f"s_mul_i32 s27, s26, {self.WM}")
            a("s_mov_b32 s28, 0")
        else:
            a("s_lshr_b32 s27, s26, 1")
            a("s_and_b32 s28, s26, 1")
            a(f"s_mul_i32 s27, s27, {self.WM}")
            a(f"s_mul_i32 s28, s28, {self.WN}")
        if self.a_in_lds is None:
            a(f"v_lshrrev_b32 v{T}, 3, v1")
            a(f"v_lshrrev_b32 v{T+1}, 4, v1")
            a("s_and_b32 s29, s26, 1")
            a("s_lshl_b32 s29, s29, 2")
            a(f"v_add_u32 v{T+1}, s29, v{T+1}")
            a(f"v_and_b32 v{T+1}, 7, v{T+1}")
            a(f"v_and_b32 v{T+2}, 7, v1")
            a(f"v_xor_b32 v{T+1}, v{T+1}, v{T+2}")
            a(f"v_lshlrev_b32 v{T+1}, 4, v{T+1}")
            a("s_lshl_b32 s29, s26, 3")
            a("s_add_u32 s29, s29, s24")
            a(f"v_add_u32 v{T}, s29, v{T}")
            a(f"s_mov_b32 s30, {self.lda}")
            a(f"v_mul_lo_u32 v{T}, v{T}, s30")
            a(f"v_add_u32 v{self.vAo}, v{T}, v{T+1}")
            for jj in range(self.NJA):
                a(f"s_mov_b32 s{40+jj}, {jj*32*self.lda}")
        a("s_lshl_b32 s30, s25, 1")
        a(f"s_mov_b32 s31, {self.ldb}")
        if self.NT == 128:
            a(f"v_lshrrev_b32 v{T}, 4, v1")
            a("s_lshr_b32 s29, s26, 1")
            a("s_and_b32 s29, s29, 1")
            a("s_lshl_b32 s29, s29, 2")
            a(f"v_add_u32 v{T+1}, s29, v{T}")
            a(f"v_lshlrev_b32 v{T+1}, 1, v{T+1}")
            a(f"v_and_b32 v{T+2}, 15, v1")
            a(f"v_xor_b32 v{T+1}, v{T+1}, v{T+2}")
            if self.gatherB:
                a(f"v_min_u32 v{T+1}, 14, v{T+1}")
                a(f"v_mul_u32_u24 v{T+2}, 205, v{T+1}")
                a(f"v_lshrrev_b32 v{T+2}, 10, v{T+2}")
                a(f"v_mul_u32_u24 v{T+3}, 5, v{T+2}")
                a(f"v_sub_u32 v{T+3}, v{T+1}, v{T+3}")
                a(f"v_lshlrev_b32 v{T+3}, 4, v{T+3}")
                a(f"v_mul_u32_u24 v{T+2}, 1280, v{T+2}")
                a(f"s_mul_i32 s30, s{hp_sgpr}, 80")
                a(f"v_add3_u32 v{T+1}, v{T+2}, v{T+3}, s30")
            else:
                a(f"v_lshlrev_b32 v{T+1}, 4, v{T+1}")
                a(f"v_add_u32 v{T+1}, s30, v{T+1}")
            a("s_lshl_b32 s29, s26, 2")
            a(f"v_add_u32 v{T}, s29, v{T}")
            a(f"v_mul_lo_u32 v{T}, v{T}, s31")
            a(f"v_add_u32 v{self.vBo}, v{T}, v{T+1}")
            for jj in range(self.NJB):
                a(f"s_mov_b32 s{44+jj}, {jj*16*self.ldb}")
        else:
            cpr = self.RB // 16
            md, sd = magic_div(cpr, 700)
            nins = self.BBUF // 1024
            for jj in range(self.NJB):
                a(f"s_add_u32 s29, s26, {4*jj}")
                a(f"s_cmp_ge_u32 s29, {nins}")
                a("s_cselect_b32 s29, s26, s29")
                a("s_lshl_b32 s29, s29, 6")
                a(f"v_add_u32 v{T}, s29, v1")
                a(f"v_mul_u32_u24 v{T+1}, {md}, v{T}")
                a(f"v_lshrrev_b32 v{T+1}, {sd}, v{T+1}")
                a(f"v_mul_u32_u24 v{T+2}, {cpr}, v{T+1}")
                a(f"v_sub_u32 v{T+2}, v{T}, v{T+2}")
                a(f"v_and_b32 v{T+3}, 0x33, v{T+1}")
                a(f"v_and_b32 v{T+4}, 4, v{T+1}")
                a(f"v_lshlrev_b32 v{T+4}, 1, v{T+4}")
                a(f"v_or_b32 v{T+3}, v{T+3}, v{T+4}")
                a(f"v_and_b32 v{T+4}, 8, v{T+1}")
                a(f"v_lshrrev_b32 v{T+4}, 1, v{T+4}")
                a(f"v_or_b32 v{T+3}, v{T+3}, v{T+4}")
                a(f"v_mul_lo_u32 v{T+3}, v{T+3}, s31")
                a(f"v_lshlrev_b32 v{T+2}, 4, v{T+2}")
                a(f"v_add3_u32 v{self.vBo+jj}, v{T+3}, v{T+2}, s30")
        a(f"v_and_b32 v{T}, 15, v1")
        a(f"v_lshrrev_b32 v{T+1}, 4, v1")
        if self.a_in_lds is None:
            a(f"v_lshrrev_b32 v{T+2}, 1, v1")
            a(f"v_and_b32 v{T+2}, 7, v{T+2}")
            a(f"v_xor_b32 v{T+2}, v{T+2}, v{T+1}")
            a(f"v_lshlrev_b32 v{T+2}, 4, v{T+2}")
            a(f"v_add_u32 v{T+3}, s27, v{T}")
            a(f"v_lshlrev_b32 v{T+3}, 7, v{T+3}")
            a(f"v_add_u32 v{self.vXr}, v{T+3}, v{T+2}")
            a(f"v_xor_b32 v{self.vXr+1}, 64, v{self.vXr}")
        else:
            off, rs = self.a_in_lds
            a(f"v_add_u32 v{T+3}, s27, v{T}")
            a(f"v_mul_u32_u24 v{T+3}, {rs}, v{T+3}")
            a(f"v_lshl_add_u32 v{self.vXr}, v{T+1}, 4, v{T+3}")
            a(f"v_add_u32 v{self.vXr}, {off}, v{self.vXr}")
        a(f"v_lshrrev_b32 v{T+2}, 2, v{T}")
        a(f"v_and_b32 v{T+3}, 3, v1")
        if self.NT == 128:
            a(f"v_lshl_add_u32 v{T+4}, v{T+1}, 3, v{T+2}")
            a(f"v_lshlrev_b32 v{T+4}, 8, v{T+4}")
            a(f"v_and_b32 v{T+5}, 1, v{T+3}")
            a(f"v_lshl_add_u32 v{T+4}, v{T+5}, 3, v{T+4}")
            a(f"v_lshrrev_b32 v{T+5}, 1, v{T+3}")
            a(f"v_lshl_add_u32 v{T+4}, v{T+5}, 4, v{T+4}")
            a(f"v_and_b32 v{T+5}, 1, v{T+1}")
            a("s_lshr_b32 s29, s28, 6")
            a(f"v_xor_b32 v{T+5}, s29, v{T+5}")
            a(f"v_lshl_add_u32 v{T+4}, v{T+5}, 7, v{T+4}")
            for nt in range(self.TN):
                a(f"v_xor_b32 v{T+5}, {nt}, v{T+2}")
                a(f"v_lshl_add_u32 v{self.vWr+nt}, v{T+5}, 5, v{T+4}")
        else:
            a(f"v_and_b32 v{T+4}, 1, v{T+1}")
            a(f"v_lshlrev_b32 v{T+4}, 2, v{T+4}")
            a(f"v_add_u32 v{T+4}, v{T+4}, v{T+2}")
            a(f"v_lshrrev_b32 v{T+5}, 1, v{T+1}")
            a(f"v_lshl_add_u32 v{T+4}, v{T+5}, 4, v{T+4}")
            a(f"v_mul_u32_u24 v{T+4}, {self.RB}, v{T+4}")
            a(f"s_lshl_b32 s29, s28, 1")
            a(f"v_lshl_add_u32 v{T+5}, v{T+3}, 3, v{T+4}")
            a(f"v_add_u32 v{self.vWr}, s29, v{T+5}")
        for i in range(self.nacc):
            a(f"v_mov_b32 v{self.ACC+i}, 0")
    def c_addr(self, ldc):
        a = self.a; T = self.vT
        a(f"v_and_b32 v{T}, 15, v1")
        a(f"v_lshrrev_b32 v{T+1}, 4, v1")
        a("s_add_u32 s29, s24, s27")
        a("s_add_u32 s30, s25, s28")
        a(f"v_add_u32 v{T+2}, s29, v{T}")
        a(f"s_mov_b32 s31, {ldc}")
        a(f"v_mul_lo_u32 v{T+2}, v{T+2}, s31")
        a(f"v_lshlrev_b32 v{T+3}, 2, v{T+1}")
        a(f"v_add_u32 v{T+3}, s30, v{T+3}")
        a(f"v_lshlrev_b32 v{T+3}, 1, v{T+3}")
        a(f"v_add_u32 v{self.vC}, v{T+2}, v{T+3}")
    def issue(self, kc):
        a = self.a
        slot = self.lds_base + (kc % self.S) * self.STAGE
        for jj in range(self.NJA):
            a(f"s_lshl_b32 m0, s26, 10")
            a(f"s_add_u32 m0, m0, {slot + jj*4096}")
            a("s_nop 0")
            a(f"buffer_load_dwordx4 v{self.vAo}, s[8:11], s{40+jj} offen lds")
        nins = self.BBUF // 1024
        for jj in range(self.NJB):
            if self.NT == 128:
                a(f"s_lshl_b32 m0, s26, 10")
                a(f"s_add_u32 m0, m0, {slot + self.ABUF + jj*4096}")
                a("s_nop 0")
                a(f"buffer_load_dwordx4 v{self.vBo}, s[12:15], s{44+jj} offen lds")
            else:
                a(f"s_add_u32 s29, s26, {4*jj}")
                a(f"s_cmp_ge_u32 s29, {nins}")
                a("s_cselect_b32 s29, s26, s29")
                a("s_lshl_b32 m0, s29, 10")
                a(f"s_add_u32 m0, m0, {slot + self.ABUF}")
                a("s_nop 0")
                a(f"buffer_load_dwordx4 v{self.vBo+jj}, s[12:15], 0 offen lds")
        if self.a_in_lds is None:
            a(f"v_add_u32 v{self.vAo}, 128, v{self.vAo}")
        if self.NT == 128:
            a(f"v_add_u32 v{self.vBo}, {64*self.ldb}, v{self.vBo}")
        else:
            for jj in range(self.NJB):
                a(f"v_add_u32 v{self.vBo+jj}, {64*self.ldb}, v{self.vBo+jj}")
    def compute(self, kc):
        a = self.a
        slot = self.lds_base + (kc % self.S) * self.STAGE
        TM, TN = self.TM, self.TN
        nrd = TM + 2 * TN
        T = self.vT
        if self.a_in_lds is None:
            a(f"v_add_u32 v{T}, {slot}, v{self.vXr}")
            a(f"v_add_u32 v{T+1}, {slot}, v{self.vXr+1}")
        nw = self.TN if self.NT == 128 else 1
        for i in range(nw):
            a(f"v_add_u32 v{T+2+i}, {slot + self.ABUF}, v{self.vWr+i}")
        for ks in range(2):
            for mt in range(TM):
                r = self.XF + (ks * TM + mt) * 4
                if self.a_in_lds is None:
                    a(f"ds_read_b128 v[{r}:{r+3}], v{T+ks} offset:{mt*2048}")
                else:
                    off, rs = self.a_in_lds
                    a(f"ds_read_b128 v[{r}:{r+3}], v{self.vXr} offset:{mt*16*rs + kc*128 + ks*64}")
            for nt in range(TN):
                for jh in range(2):
                    r = self.WF + (ks * TN + nt) * 4 + jh * 2
                    if self.NT == 128:
                        a(f"ds_read_b64_tr_b16 v[{r}:{r+1}], v{T+2+nt} offset:{(32*ks + 4*jh)*256}")
                    else:
                        a(f"ds_read_b64_tr_b16 v[{r}:{r+1}], v{T+2} offset:{(32*ks + 8*jh)*self.RB + nt*32}")
        for ks in range(2):
            a(f"s_waitcnt lgkmcnt({nrd if ks == 0 else 0})")
            for mt in range(TM):
                for nt in range(TN):
                    xa = self.XF + (ks * TM + mt) * 4
                    wa = self.WF + (ks * TN + nt) * 4
                    c = self.ACC + (mt * TN + nt) * 4
                    a(f"v_mfma_f32_16x16x32_bf16 v[{c}:{c+3}], v[{wa}:{wa+3}], v[{xa}:{xa+3}], v[{c}:{c+3}]")
    def mainloop(self):
        a = self.a
        S, NK, D = self.S, self.NK, self.D
        for kc in range(min(S - 1, NK)):
            self.issue(kc)
        for kc in range(NK):
            a(f"s_waitcnt vmcnt({D * min(S - 2, NK - 1 - kc)})")
            a("s_barrier")
            if kc + S - 1 < NK:
                self.issue(kc + S - 1)
            self.compute(kc)
        a("s_nop 15")

def epilogue_std(g, epi, ldc, colmask=None):
    a = g.a; T = g.vT
    for mt in range(g.TM):
        a(f"v_add_u32 v{T}, {mt*16*ldc}, v{g.vC}")
        if epi == 'residual':
            for nt in range(g.TN):
                a(f"buffer_load_dwordx2 v[{g.XF+2*nt}:{g.XF+2*nt+1}], v{T}, s[20:23], 0 offen offset:{nt*32}")
            a("s_waitcnt vmcnt(0)")
        for nt in range(g.TN):
            c = g.ACC + (mt * g.TN + nt) * 4
            if epi == 'residual':
                for i in range(4):
                    bf16_round(a, c + i, c + i)
                r = g.XF + 2 * nt
                a(f"v_lshlrev_b32 v{T+1}, 16, v{r}")
                a(f"v_and_b32 v{T+2}, 0xffff0000, v{r}")
                a(f"v_lshlrev_b32 v{T+3}, 16, v{r+1}")
                a(f"v_and_b32 v{T+4}, 0xffff0000, v{r+1}")
                for i in range(4):
                    a(f"v_add_f32 v{c+i}, v{c+i}, v{T+1+i}")
            elif epi == 'silu':
                for i in range(4):
                    bf16_round(a, c + i, c + i)
                    a(f"v_mul_f32 v{T+1+i}, 0xbfb8aa3b, v{c+i}")
                for i in range(4):
                    a(f"v_exp_f32 v{T+1+i}, v{T+1+i}")
                a("s_nop 0")
                for i in range(4):
                    a(f"v_add_f32 v{T+1+i}, 1.0, v{T+1+i}")
                for i in range(4):
                    a(f"v_rcp_f32 v{T+1+i}, v{T+1+i}")
                a("s_nop 0")
                for i in range(4):
                    a(f"v_mul_f32 v{c+i}, v{c+i}, v{T+1+i}")
            a(f"v_cvt_pk_bf16_f32 v{c}, v{c}, v{c+1}")
            a(f"v_cvt_pk_bf16_f32 v{c+1}, v{c+2}, v{c+3}")
            if colmask is not None:
                colmask(nt, True)
            a(f"buffer_store_dwordx2 v[{c}:{c+1}], v{T}, s[16:19], 0 offen offset:{nt*32}")
            if colmask is not None:
                colmask(nt, False)

def gen_gemm2(name, M, N, K, MT, NT, WGM, WGN, srcA, lda, srcB, ldb, dstC, ldc, epi, S, srcR=None, ldr=0):
    a = Asm()
    g = Gemm(a, M, N, K, MT, NT, WGM, WGN, lda, ldb, S)
    ntn = (N + NT - 1) // NT
    nwg = (M // MT) * ntn
    a(f"s_cmp_ge_u32 s2, {nwg}")
    a(f"s_cbranch_scc1 {name}_end")
    load_srd(a, 8, srcA, M * lda, 4)
    load_srd(a, 12, srcB, K * ldb, 4)
    load_srd(a, 16, dstC, M * ldc, 4)
    if epi == 'residual':
        load_srd(a, 20, srcR, M * ldr, 4)
    g.tile_coords()
    g.setup()
    g.c_addr(ldc)
    g.mainloop()
    colmask = None
    if N % NT != 0:
        def colmask(nt, on):
            if on:
                a(f"v_lshrrev_b32 v{g.vT+8}, 4, v1")
                a(f"v_lshlrev_b32 v{g.vT+8}, 2, v{g.vT+8}")
                a("s_add_u32 s29, s25, s28")
                a(f"v_add_u32 v{g.vT+8}, s29, v{g.vT+8}")
                a(f"v_add_u32 v{g.vT+8}, {16*nt}, v{g.vT+8}")
                a(f"v_cmp_gt_u32 vcc, {N}, v{g.vT+8}")
                a("s_and_saveexec_b64 s[34:35], vcc")
            else:
                a("s_mov_b64 exec, s[34:35]")
    epilogue_std(g, epi, ldc, colmask)
    a.label(f"{name}_end")
    a("s_endpgm")
    kernels.append((name, (nwg,1,1), (256,1,1), g.lds_end, g.vend, a.text()))

if __name__ == "__main__":
    from gen1b import gen_feat, gen_o
    gen_ln("ln1_kernel", ('in', 'x'), ('ws', WS_XN), True)
    gen_gemm2("qkv_kernel", 2048, 1920, 640, 128, 128, 2, 2, ('ws', WS_XN), 1280, ('in', 'wqkv'), 3840, ('ws', WS_QKV), 3840, 'store', 4)
    gen_feat("feat_kernel")
    gen_o("o_kernel")
    gen_gemm2("wo_kernel", 2048, 640, 640, 64, 80, 4, 1, ('ws', WS_O), 1280, ('in', 'wo'), 1280, ('ws', WS_H), 1280, 'residual', 6, ('in', 'x'), 1280)
    gen_ln("ln2_kernel", ('ws', WS_H), ('ws', WS_HN), False)
    gen_gemm2("w1_kernel", 2048, 1728, 640, 128, 128, 2, 2, ('ws', WS_HN), 1280, ('in', 'w1'), 3456, ('ws', WS_S), 3456, 'silu', 4)
    gen_gemm2("w2_kernel", 2048, 640, 1728, 64, 80, 4, 1, ('ws', WS_S), 3456, ('in', 'w2'), 1280, ('in', 'out'), 1280, 'residual', 6, ('ws', WS_H), 1280)
    emit(sys.argv[1] if len(sys.argv) > 1 else "v2.s")
```

```python
import sys
from asmlib import *
from gen1 import *
from gen2 import Gemm

def epilogue_lds(g, epi, ldc, N, ldr=0):
    a = g.a; T = g.vT
    CS = g.NT * 2 + 16
    a("s_barrier")
    a(f"v_and_b32 v{T}, 15, v1")
    a(f"v_lshrrev_b32 v{T+1}, 4, v1")
    a(f"v_add_u32 v{T}, s27, v{T}")
    a(f"v_mul_u32_u24 v{T}, {CS}, v{T}")
    a(f"v_lshlrev_b32 v{T+1}, 3, v{T+1}")
    a(f"s_lshl_b32 s29, s28, 1")
    a(f"v_add3_u32 v{T}, v{T}, v{T+1}, s29")
    for mt in range(g.TM):
        for nt in range(g.TN):
            c = g.ACC + (mt * g.TN + nt) * 4
            if epi == 'silu':
                for i in range(4):
                    bf16_round(a, c + i, c + i)
                    a(f"v_mul_f32 v{T+1+i}, 0xbfb8aa3b, v{c+i}")
                for i in range(4):
                    a(f"v_exp_f32 v{T+1+i}, v{T+1+i}")
                a("s_nop 0")
                for i in range(4):
                    a(f"v_add_f32 v{T+1+i}, 1.0, v{T+1+i}")
                for i in range(4):
                    a(f"v_rcp_f32 v{T+1+i}, v{T+1+i}")
                a("s_nop 0")
                for i in range(4):
                    a(f"v_mul_f32 v{c+i}, v{c+i}, v{T+1+i}")
            a(f"v_cvt_pk_bf16_f32 v{c}, v{c}, v{c+1}")
            a(f"v_cvt_pk_bf16_f32 v{c+1}, v{c+2}, v{c+3}")
            a(f"ds_write_b64 v{T}, v[{c}:{c+1}] offset:{mt*16*CS + nt*32}")
    a("s_waitcnt lgkmcnt(0)")
    a("s_barrier")
    cpr = g.NT // 8
    nch = g.MT * cpr
    npass = (nch + 255) // 256
    md, sd = magic_div(cpr, nch + 256)
    base = g.XF
    a("s_mul_i32 s29, s24, %d" % ldc)
    a("s_lshl_b32 s30, s25, 1")
    a("s_add_u32 s29, s29, s30")
    if epi == 'residual':
        a("s_mul_i32 s31, s24, %d" % ldr)
        a("s_add_u32 s31, s31, s30")
    for i in range(npass):
        r = base + i * 12
        a(f"v_add_u32 v{T}, {256*i}, v0")
        a(f"v_mul_u32_u24 v{T+1}, {md}, v{T}")
        a(f"v_lshrrev_b32 v{T+1}, {sd}, v{T+1}")
        a(f"v_mul_u32_u24 v{T+2}, {cpr}, v{T+1}")
        a(f"v_sub_u32 v{T+2}, v{T}, v{T+2}")
        a(f"v_mul_u32_u24 v{T+3}, {CS}, v{T+1}")
        a(f"v_lshl_add_u32 v{T+3}, v{T+2}, 4, v{T+3}")
        a(f"ds_read_b128 v[{r}:{r+3}], v{T+3}")
        a(f"v_mul_u32_u24 v{T+3}, {ldc}, v{T+1}")
        a(f"v_lshl_add_u32 v{r+8}, v{T+2}, 4, v{T+3}")
        a(f"v_lshlrev_b32 v{T+4}, 3, v{T+2}")
        a(f"v_add_u32 v{T+4}, s25, v{T+4}")
        a(f"v_cmp_gt_u32 vcc, {nch}, v{T}")
        a("s_mov_b64 s[34:35], vcc")
        a(f"v_cmp_gt_u32 vcc, {N}, v{T+4}")
        a("s_and_b64 s[34:35], s[34:35], vcc")
        a("v_mov_b32 v%d, 0" % (r + 9))
        a(f"v_cndmask_b32 v{r+8}, -1, v{r+8}, s[34:35]")
        if epi == 'residual':
            if ldr != ldc:
                raise NotImplementedError
            a(f"buffer_load_dwordx4 v[{r+4}:{r+7}], v{r+8}, s[20:23], s31 offen")
    a("s_waitcnt vmcnt(0) lgkmcnt(0)")
    for i in range(npass):
        r = base + i * 12
        if epi == 'residual':
            for j in range(4):
                a(f"v_lshlrev_b32 v{T}, 16, v{r+j}")
                a(f"v_and_b32 v{T+1}, 0xffff0000, v{r+j}")
                a(f"v_lshlrev_b32 v{T+2}, 16, v{r+4+j}")
                a(f"v_and_b32 v{T+3}, 0xffff0000, v{r+4+j}")
                a(f"v_add_f32 v{T}, v{T}, v{T+2}")
                a(f"v_add_f32 v{T+1}, v{T+1}, v{T+3}")
                a(f"v_cvt_pk_bf16_f32 v{r+j}, v{T}, v{T+1}")
        a(f"buffer_store_dwordx4 v[{r}:{r+3}], v{r+8}, s[16:19], s29 offen")
    return max(g.vend, base + npass * 12)

def xcd_map_factory(ntm, ntn, bm, bn):
    assert 8 * bm * bn == ntm * ntn
    nbn = ntn // bn
    def f(a):
        a("s_and_b32 s29, s2, 7")
        a("s_lshr_b32 s30, s2, 3")
        md, sd = magic_div(nbn, 8)
        a(f"s_mul_i32 s31, s29, {md}")
        a(f"s_lshr_b32 s31, s31, {sd}")
        a(f"s_mul_i32 s32, s31, {nbn}")
        a("s_sub_u32 s32, s29, s32")
        md, sd = magic_div(bn, 64)
        a(f"s_mul_i32 s33, s30, {md}")
        a(f"s_lshr_b32 s33, s33, {sd}")
        a(f"s_mul_i32 s34, s33, {bn}")
        a("s_sub_u32 s34, s30, s34")
        a(f"s_mul_i32 s24, s31, {bm}")
        a("s_add_u32 s24, s24, s33")
        a(f"s_mul_i32 s25, s32, {bn}")
        a("s_add_u32 s25, s25, s34")
    return f

def gen_gemm3(name, M, N, K, MT, NT, WGM, WGN, srcA, lda, srcB, ldb, dstC, ldc, epi, S, srcR=None, ldr=0, xmap=None):
    a = Asm()
    g = Gemm(a, M, N, K, MT, NT, WGM, WGN, lda, ldb, S)
    ntn = (N + NT - 1) // NT
    nwg = (M // MT) * ntn
    a(f"s_cmp_ge_u32 s2, {nwg}")
    a(f"s_cbranch_scc1 {name}_end")
    load_srd(a, 8, srcA, M * lda, 4)
    load_srd(a, 12, srcB, K * ldb, 4)
    load_srd(a, 16, dstC, M * ldc, 4)
    if epi == 'residual':
        load_srd(a, 20, srcR, M * ldr, 4)
    g.tile_coords(xmap)
    g.setup()
    g.mainloop()
    nv = epilogue_lds(g, epi, ldc, N, ldr)
    a.label(f"{name}_end")
    a("s_endpgm")
    kernels.append((name, (nwg,1,1), (256,1,1), g.lds_end, nv, a.text()))

if __name__ == "__main__":
    from gen1b import gen_feat, gen_o
    X = int(sys.argv[2]) if len(sys.argv) > 2 else 1
    gen_ln("ln1_kernel", ('in', 'x'), ('ws', WS_XN), True)
    gen_gemm3("qkv_kernel", 2048, 1920, 640, 128, 128, 2, 2, ('ws', WS_XN), 1280, ('in', 'wqkv'), 3840, ('ws', WS_QKV), 3840, 'store', 4,
              xmap=xcd_map_factory(16, 15, 2, 15) if X else None)
    gen_feat("feat_kernel")
    gen_o("o_kernel")
    gen_gemm3("wo_kernel", 2048, 640, 640, 64, 80, 4, 1, ('ws', WS_O), 1280, ('in', 'wo'), 1280, ('ws', WS_H), 1280, 'residual', 6, ('in', 'x'), 1280,
              xmap=xcd_map_factory(32, 8, 4, 8) if X else None)
    gen_ln("ln2_kernel", ('ws', WS_H), ('ws', WS_HN), False)
    gen_gemm3("w1_kernel", 2048, 1728, 640, 128, 128, 2, 2, ('ws', WS_HN), 1280, ('in', 'w1'), 3456, ('ws', WS_S), 3456, 'silu', 4,
              xmap=xcd_map_factory(16, 14, 2, 14) if X else None)
    gen_gemm3("w2_kernel", 2048, 640, 1728, 64, 80, 4, 1, ('ws', WS_S), 3456, ('in', 'w2'), 1280, ('in', 'out'), 1280, 'residual', 6, ('ws', WS_H), 1280,
              xmap=xcd_map_factory(32, 8, 4, 8) if X else None)
    emit(sys.argv[1] if len(sys.argv) > 1 else "v3.s")
```

```python
import sys
from asmlib import *
from gen1 import *
from gen2 import Gemm
from gen3 import epilogue_lds, xcd_map_factory, gen_gemm3

LOG2E = 0x3fb8aa3b

def gen_k1(name):
    a = Asm()
    g = Gemm(a, 2048, 2048, 640, 128, 128, 2, 2, 1280, 3840, 4, gatherB=True)
    TS = 272; PS = 176; KS = 160
    WP0 = 0
    T0 = 4096
    PQ0 = T0 + 128 * TS + 64
    PK0 = PQ0 + 128 * PS + 64
    a("s_cmp_ge_u32 s2, 256")
    a(f"s_cbranch_scc1 {name}_end")
    load_srd(a, 8, ('ws', WS_XN), 2048 * 1280, 4)
    load_srd(a, 12, ('in', 'wqkv'), 640 * 3840, 4)
    a("s_and_b32 s29, s2, 7")
    a("s_lshr_b32 s30, s2, 3")
    a("s_lshl_b32 s24, s29, 1")
    a("s_lshr_b32 s31, s30, 4")
    a("s_add_u32 s24, s24, s31")
    a("s_and_b32 s36, s30, 15")
    a("s_mov_b32 s25, 0")
    a("s_mul_i32 s24, s24, 128")
    g.setup(hp_sgpr=36)
    load_srd(a, 20, ('in', 'wphi'), 32 * 800, 4)
    a("s_mul_i32 s37, s36, 1600")
    g.mainloop()
    for hh in range(2):
        for i in range(2):
            a(f"v_add_u32 v2, {256*i}, v0")
            a("v_lshlrev_b32 v3, 1, v2")
            a(f"buffer_load_ushort v{8+2*hh+i}, v3, s[20:23], s37 offen offset:{hh*800}")
    load_srd(a, 16, ('ws', WS_PHIQ), 2048 * 2560, 4)
    load_srd(a, 44, ('ws', WS_KV), 32 * 32 * 64 * 4, 4)
    a("s_barrier")
    a("v_lshlrev_b32 v2, 4, v0")
    a("v_mov_b32 v4, 0\nv_mov_b32 v5, 0\nv_mov_b32 v6, 0\nv_mov_b32 v7, 0")
    a(f"ds_write_b128 v2, v[4:7] offset:{WP0}")
    T = 14
    a(f"v_and_b32 v{T}, 15, v1")
    a(f"v_lshrrev_b32 v{T+1}, 4, v1")
    a(f"v_add_u32 v{T}, s27, v{T}")
    a(f"v_mul_u32_u24 v{T}, {TS}, v{T}")
    a(f"v_lshlrev_b32 v{T+1}, 3, v{T+1}")
    a(f"s_lshl_b32 s29, s28, 1")
    a(f"v_add3_u32 v{T}, v{T}, v{T+1}, s29")
    for mt in range(4):
        for nt in range(4):
            c = g.ACC + (mt * 4 + nt) * 4
            a(f"v_cvt_pk_bf16_f32 v{c}, v{c}, v{c+1}")
            a(f"v_cvt_pk_bf16_f32 v{c+1}, v{c+2}, v{c+3}")
            a(f"ds_write_b64 v{T}, v[{c}:{c+1}] offset:{T0 + mt*16*TS + nt*32}")
    a("s_waitcnt lgkmcnt(0)")
    a("s_barrier")
    m20, s20 = magic_div(20, 600)
    a("s_waitcnt vmcnt(0)")
    for hh in range(2):
        for i in range(2):
            a(f"v_add_u32 v2, {256*i}, v0")
            a(f"v_mul_u32_u24 v3, {m20}, v2")
            a(f"v_lshrrev_b32 v3, {s20}, v3")
            a("v_mul_u32_u24 v4, 20, v3")
            a("v_sub_u32 v4, v2, v4")
            a("v_lshlrev_b32 v3, 6, v3")
            a("v_lshl_add_u32 v3, v4, 1, v3")
            a("v_cmp_gt_u32 vcc, 400, v2")
            a("s_and_saveexec_b64 s[30:31], vcc")
            a(f"ds_write_b16 v3, v{8+2*hh+i} offset:{WP0 + hh*2048}")
            a("s_mov_b64 exec, s[30:31]")
    a("s_waitcnt lgkmcnt(0)")
    a("s_barrier")
    a("v_and_b32 v2, 15, v1")
    a("v_lshrrev_b32 v3, 4, v1")
    a("v_lshrrev_b32 v4, 2, v2")
    a("v_and_b32 v5, 3, v1")
    a("s_mov_b32 s32, s26")
    a("v_lshl_add_u32 v7, v3, 3, v4")
    a("v_lshlrev_b32 v7, 6, v7")
    a("v_lshl_add_u32 v7, v5, 3, v7")
    for hh in range(2):
        for mt in range(2):
            for jh in range(2):
                r = 64 + (hh * 2 + mt) * 4 + jh * 2
                a(f"ds_read_b64_tr_b16 v[{r}:{r+1}], v7 offset:{WP0 + hh*2048 + jh*256 + mt*32}")
    a("s_lshl_b32 s33, s32, 5")
    a("v_add_u32 v8, s33, v2")
    a(f"v_mul_u32_u24 v9, {TS}, v8")
    a("v_lshl_add_u32 v9, v3, 4, v9")
    a(f"v_mul_u32_u24 v10, {PS}, v8")
    a("v_lshl_add_u32 v10, v3, 3, v10")
    a("v_cmp_gt_u32 s[34:35], 16, v1")
    for rt in range(2):
        for sec in range(2):
            for hh in range(2):
                off = T0 + rt * 16 * TS + (sec * 40 + 20 * hh) * 2
                a(f"ds_read_b64 v[80:81], v9 offset:{off}")
                a(f"ds_read_b64 v[82:83], v9 offset:{off+8}")
                a("s_waitcnt lgkmcnt(0)")
                for mt in range(2):
                    wa = 64 + (hh * 2 + mt) * 4
                    a(f"v_mfma_f32_16x16x32_bf16 v[{84+4*mt}:{87+4*mt}], v[{wa}:{wa+3}], v[80:83], 0")
                a("s_nop 7")
                for mt in range(2):
                    c = 84 + 4 * mt
                    a(f"v_cvt_pk_bf16_f32 v{c}, v{c}, v{c+1}")
                    a(f"v_cvt_pk_bf16_f32 v{c+1}, v{c+2}, v{c+3}")
                    woff = PQ0 + rt * 16 * PS + (sec * 40 + 20 * hh + 16 * mt) * 2
                    if mt == 1:
                        a("s_and_saveexec_b64 s[30:31], s[34:35]")
                    a(f"ds_write_b64 v10, v[{c}:{c+1}] offset:{woff}")
                    if mt == 1:
                        a("s_mov_b64 exec, s[30:31]")
    a("s_waitcnt lgkmcnt(0)")
    a("s_barrier")
    a("v_lshrrev_b32 v8, 1, v0")
    a("v_and_b32 v9, 1, v0")
    a(f"v_mul_u32_u24 v10, {PS}, v8")
    a("v_mul_u32_u24 v11, 40, v9")
    a("v_add_u32 v10, v10, v11")
    a(f"v_mul_u32_u24 v12, {KS}, v8")
    a("v_mul_u32_u24 v13, 80, v9")
    a("v_add_u32 v12, v12, v13")
    a(f"v_add_u32 v12, {PK0}, v12")
    a("v_add_u32 v14, s24, v8")
    a("v_mul_u32_u24 v14, 2560, v14")
    a("s_mul_i32 s28, s36, 160")
    a("v_add3_u32 v14, v14, v13, s28")
    for sec in range(2):
        for k in range(5):
            a(f"ds_read_b64 v[{16+2*k}:{17+2*k}], v10 offset:{PQ0 + sec*80 + 8*k}")
        a("s_waitcnt lgkmcnt(0)")
        for k in range(10):
            a(f"v_and_b32 v{33+2*k}, 0xffff0000, v{16+k}")
            a(f"v_lshlrev_b32 v{32+2*k}, 16, v{16+k}")
        a("v_max_f32 v28, v32, v33")
        a("v_min_f32 v29, v32, v33")
        for k in range(2, 20):
            a(f"v_max_f32 v28, v28, v{32+k}")
            a(f"v_min_f32 v29, v29, v{32+k}")
        a(f"s_mov_b32 s38, {LOG2E}")
        for k in range(20):
            a(f"v_sub_f32 v{52+k}, v{32+k}, v28")
            a(f"v_sub_f32 v{72+k}, v29, v{32+k}")
        for k in range(20):
            a(f"v_mul_f32 v{52+k}, s38, v{52+k}")
            a(f"v_mul_f32 v{72+k}, s38, v{72+k}")
        for k in range(20):
            a(f"v_exp_f32 v{52+k}, v{52+k}")
            a(f"v_exp_f32 v{72+k}, v{72+k}")
        a("s_nop 0")
        a("v_add_f32 v28, v52, v53")
        a("v_add_f32 v29, v72, v73")
        for k in range(2, 20):
            a(f"v_add_f32 v28, v28, v{52+k}")
            a(f"v_add_f32 v29, v29, v{72+k}")
        a("v_rcp_f32 v30, v28")
        a("v_rcp_f32 v31, v29")
        a("s_nop 0")
        for k in range(20):
            a(f"v_mul_f32 v15, v{52+k}, v30")
            a(f"v_fma_f32 v{52+k}, -v15, v28, v{52+k}")
            a(f"v_fma_f32 v{52+k}, v{52+k}, v30, v15")
            a(f"v_mul_f32 v15, v{72+k}, v31")
            a(f"v_fma_f32 v{72+k}, -v15, v29, v{72+k}")
            a(f"v_fma_f32 v{72+k}, v{72+k}, v31, v15")
        for k in range(20):
            src = 52 + 2 * k if k < 10 else 72 + 2 * (k - 10)
            a(f"v_cvt_pk_bf16_f32 v{16+k}, v{src}, v{src+1}")
        for k in range(5):
            if sec == 0:
                a(f"buffer_store_dwordx4 v[{16+4*k}:{19+4*k}], v14, s[16:19], 0 offen offset:{16*k}")
            else:
                a(f"ds_write_b128 v12, v[{16+4*k}:{19+4*k}] offset:{16*k}")
        a("s_nop 1")
    a("s_waitcnt lgkmcnt(0)")
    a("s_barrier")
    a("s_and_b32 s33, s32, 1")
    a("s_lshr_b32 s34, s32, 1")
    a("v_lshl_add_u32 v8, v3, 3, v4")
    a(f"v_mul_u32_u24 v9, {TS}, v8")
    a("v_lshl_add_u32 v9, v5, 3, v9")
    a("s_mul_i32 s35, s33, 40")
    a("s_lshl_b32 s38, s34, 5")
    a("s_add_u32 s35, s35, s38")
    a("v_add_u32 v9, s35, v9")
    a(f"v_mul_u32_u24 v10, {KS}, v8")
    a("v_lshl_add_u32 v10, v5, 3, v10")
    a("s_mul_i32 s35, s33, 80")
    a(f"s_add_u32 s35, s35, {PK0}")
    a("v_add_u32 v10, s35, v10")
    a("v_cmp_le_u32 s[38:39], 4, v2")
    a("s_cmp_eq_u32 s34, 1")
    a("s_cselect_b64 s[38:39], s[38:39], 0")
    a("v_mov_b32 v11, 0x3f803f80")
    for nt in range(3):
        for i in range(4):
            a(f"v_mov_b32 v{96+4*nt+i}, 0")
    for ks in range(4):
        for jh in range(2):
            a(f"ds_read_b64_tr_b16 v[{64+2*jh}:{65+2*jh}], v9 offset:{T0 + 160 + (32*ks + 4*jh)*TS}")
        for nt in range(3):
            for jh in range(2):
                a(f"ds_read_b64_tr_b16 v[{68+4*nt+2*jh}:{69+4*nt+2*jh}], v10 offset:{(32*ks+4*jh)*KS + nt*32}")
        a("s_waitcnt lgkmcnt(0)")
        for i in range(4):
            a(f"v_cndmask_b32 v{64+i}, v{64+i}, v11, s[38:39]")
        a("s_nop 1")
        for nt in range(3):
            a(f"v_mfma_f32_16x16x32_bf16 v[{96+4*nt}:{99+4*nt}], v[64:67], v[{68+4*nt}:{71+4*nt}], v[{96+4*nt}:{99+4*nt}]")
    a("s_nop 15")
    a("s_lshl_b32 s35, s36, 1")
    a("s_add_u32 s35, s35, s33")
    a("s_lshl_b32 s35, s35, 5")
    a("s_lshl_b32 s38, s34, 4")
    a("s_add_u32 s35, s35, s38")
    a("v_lshlrev_b32 v12, 2, v3")
    a("v_add_u32 v12, s35, v12")
    a("v_lshlrev_b32 v12, 8, v12")
    a("v_lshl_add_u32 v12, v2, 2, v12")
    a("v_cmp_gt_u32 s[40:41], 8, v2")
    a("v_cmp_eq_u32 s[42:43], 0, v3")
    a("v_cmp_gt_u32 s[48:49], 2, v3")
    a("s_cmp_eq_u32 s34, 0")
    a("s_cselect_b64 s[42:43], -1, s[42:43]")
    a("s_cselect_b64 s[48:49], -1, s[48:49]")
    a("s_mov_b64 s[30:31], exec")
    for nt in range(3):
        for i in range(4):
            src = "s[48:49]" if i == 0 else "s[42:43]"
            if nt == 2:
                a(f"s_and_b64 exec, {src}, s[40:41]")
            else:
                a(f"s_mov_b64 exec, {src}")
            a(f"buffer_atomic_add_f32 v{96+4*nt+i}, v12, s[44:47], 0 offen offset:{i*256 + nt*64}")
    a("s_mov_b64 exec, s[30:31]")
    a.label(f"{name}_end")
    a("s_endpgm")
    kernels.append((name, (256,1,1), (256,1,1), g.lds_end, max(g.vend, 112), a.text()))

def gen_k2(name):
    a = Asm()
    OS = 1280 + 16
    OT = 64 * OS
    g = Gemm(a, 2048, 640, 640, 64, 80, 4, 1, 1280, 1280, 6, lds_base=OT, a_in_lds=(0, OS))
    a("s_cmp_ge_u32 s2, 256")
    a(f"s_cbranch_scc1 {name}_end")
    load_srd(a, 12, ('in', 'wo'), 640 * 1280, 4)
    load_srd(a, 16, ('ws', WS_H), ACT_BYTES, 4)
    load_srd(a, 20, ('in', 'x'), ACT_BYTES, 4)
    load_srd(a, 8, ('ws', WS_PHIQ), 2048 * 2560, 4)
    load_srd(a, 44, ('ws', WS_KV), 32 * 32 * 64 * 4, 4)
    g.tile_coords(xcd_map_factory(32, 8, 4, 8))
    g.setup()
    S, NK, D = g.S, g.NK, g.D
    for kc in range(S - 1):
        g.issue(kc)
    a("v_and_b32 v100, 15, v1")
    a("v_lshrrev_b32 v101, 4, v1")
    O = 110
    a("v_lshlrev_b32 v102, 8, v100")
    a("v_lshl_add_u32 v102, v101, 5, v102")
    a("v_add_u32 v103, 4096, v102")
    a("v_lshlrev_b32 v104, 5, v101")
    a("v_add_u32 v104, 5120, v104")
    a("v_add_u32 v105, s24, v100")
    a("v_mul_u32_u24 v105, 2560, v105")
    a("v_lshl_add_u32 v105, v101, 4, v105")
    a(f"v_mul_u32_u24 v106, {OS}, v100")
    a("v_lshl_add_u32 v106, v101, 3, v106")
    a("v_cmp_gt_u32 s[34:35], 16, v1")
    for hi in range(8):
        a("s_lshl_b32 s36, s26, 3")
        a(f"s_add_u32 s36, s36, {hi}")
        a("s_lshl_b32 s37, s36, 13")
        a("s_mul_i32 s38, s36, 80")
        a("s_mul_i32 s39, s36, 40")
        for mt in range(2):
            for ks in range(2):
                for q in range(2):
                    r = O + ((mt * 2 + ks) * 2 + q) * 4
                    a(f"buffer_load_dwordx4 v[{r}:{r+3}], v{102 if mt == 0 else 103}, s[44:47], s37 offen offset:{ks*128 + q*16}")
        for ks in range(2):
            for q in range(2):
                r = O + 32 + (ks * 2 + q) * 4
                a(f"buffer_load_dwordx4 v[{r}:{r+3}], v104, s[44:47], s37 offen offset:{ks*128 + q*16}")
        for rt in range(4):
            for ks in range(2):
                r = O + 48 + (rt * 2 + ks) * 4
                a(f"v_add_u32 v107, {rt*16*2560}, v105")
                a(f"buffer_load_dwordx4 v[{r}:{r+3}], v107, s[8:11], s38 offen offset:{ks*64}")
        a(f"s_waitcnt vmcnt(0)")
        F = O + 80
        for mt in range(2):
            for ks in range(2):
                for j in range(4):
                    s0 = O + ((mt * 2 + ks) * 2) * 4 + 2 * j
                    a(f"v_cvt_pk_bf16_f32 v{F+(mt*2+ks)*4+j}, v{s0}, v{s0+1}")
        for ks in range(2):
            for j in range(4):
                s0 = O + 32 + (ks * 2) * 4 + 2 * j
                a(f"v_cvt_pk_bf16_f32 v{F+16+ks*4+j}, v{s0}, v{s0+1}")
        a("s_nop 1")
        Cn = F + 24
        for rt in range(4):
            for mt in range(2):
                for ks in range(2):
                    b = O + 48 + (rt * 2 + ks) * 4
                    c = Cn + mt * 4
                    srcc = "0" if ks == 0 else f"v[{c}:{c+3}]"
                    a(f"v_mfma_f32_16x16x32_bf16 v[{c}:{c+3}], v[{F+(mt*2+ks)*4}:{F+3+(mt*2+ks)*4}], v[{b}:{b+3}], {srcc}")
            dn = Cn + 8
            for ks in range(2):
                b = O + 48 + (rt * 2 + ks) * 4
                srcc = "0" if ks == 0 else f"v[{dn}:{dn+3}]"
                a(f"v_mfma_f32_16x16x32_bf16 v[{dn}:{dn+3}], v[{F+16+ks*4}:{F+19+ks*4}], v[{b}:{b+3}], {srcc}")
            a("s_nop 7")
            bf16_round(a, dn + 4, dn)
            a(f"v_add_f32 v{dn+4}, 0x358637bd, v{dn+4}")
            bf16_round(a, dn + 4, dn + 4)
            a(f"v_rcp_f32 v{dn+5}, v{dn+4}")
            a(f"v_add_u32 v107, {rt*16*OS}, v106")
            a(f"v_add_u32 v107, s39, v107")
            for mt in range(2):
                c = Cn + mt * 4
                for i in range(4):
                    bf16_round(a, c + i, c + i)
                    a(f"v_mul_f32 v{dn+6}, v{c+i}, v{dn+5}")
                    a(f"v_fma_f32 v{c+i}, -v{dn+6}, v{dn+4}, v{c+i}")
                    a(f"v_fma_f32 v{c+i}, v{c+i}, v{dn+5}, v{dn+6}")
                a(f"v_cvt_pk_bf16_f32 v{c}, v{c}, v{c+1}")
                a(f"v_cvt_pk_bf16_f32 v{c+1}, v{c+2}, v{c+3}")
                if mt == 1:
                    a("s_and_saveexec_b64 s[30:31], s[34:35]")
                a(f"ds_write_b64 v107, v[{c}:{c+1}] offset:{mt*32}")
                if mt == 1:
                    a("s_mov_b64 exec, s[30:31]")
    a("s_waitcnt lgkmcnt(0)")
    for kc in range(NK):
        a(f"s_waitcnt vmcnt({D * min(S - 2, NK - 1 - kc)})")
        a("s_barrier")
        if kc + S - 1 < NK:
            g.issue(kc + S - 1)
        g.compute(kc)
    a("s_nop 15")
    nv = epilogue_lds(g, 'residual', 1280, 640, 1280)
    a.label(f"{name}_end")
    a("s_endpgm")
    kernels.append((name, (256,1,1), (256,1,1), g.lds_end, max(nv, O + 80 + 24 + 16), a.text()))

if __name__ == "__main__":
    gen_ln("ln1_kernel", ('in', 'x'), ('ws', WS_XN), True)
    gen_k1("k1_kernel")
    gen_k2("k2_kernel")
    gen_ln("ln2_kernel", ('ws', WS_H), ('ws', WS_HN), False)
    gen_gemm3("w1_kernel", 2048, 1728, 640, 128, 128, 2, 2, ('ws', WS_HN), 1280, ('in', 'w1'), 3456, ('ws', WS_S), 3456, 'silu', 4,
              xmap=xcd_map_factory(16, 14, 2, 14))
    gen_gemm3("w2_kernel", 2048, 640, 1728, 64, 80, 4, 1, ('ws', WS_S), 3456, ('in', 'w2'), 1280, ('in', 'out'), 1280, 'residual', 6, ('ws', WS_H), 1280,
              xmap=xcd_map_factory(32, 8, 4, 8))
    emit(sys.argv[1] if len(sys.argv) > 1 else "v4.s")
```

```python
import re
class Asm:
    def __init__(self):
        self.lines = []
        self.lbl = 0
    def __call__(self, s):
        for ln in s.strip("\n").split("\n"):
            ln = ln.strip()
            if ln.startswith("buffer_") or ln.startswith("global_"):
                m = re.search(r"offset:(\d+)", ln)
                if m:
                    assert int(m.group(1)) < 4096, ln
            if ln.startswith("ds_"):
                m = re.search(r"offset:(\d+)", ln)
                if m:
                    assert int(m.group(1)) < 65536, ln
            self.lines.append("    " + ln)
    def label(self, name):
        self.lines.append(f"{name}:")
    def newlabel(self, base="L"):
        self.lbl += 1
        return f"{base}_{self.lbl}"
    def comment(self, s):
        self.lines.append("    ; " + s)
    STAMP = False
    def stamp_init(self):
        if not Asm.STAMP: return
        self("s_add_u32 s88, s82, 0x3000000")
        self("s_addc_u32 s89, s83, 0")
        self("s_and_b32 s89, s89, 0xffff")
        self("s_mov_b32 s90, 0x1000000")
        self("s_mov_b32 s91, 0x00020000")
        self("s_lshl_b32 s94, s2, 4")
        self("s_add_u32 s94, s94, s26")
        self("s_lshl_b32 s94, s94, 8")
        self("v_mov_b32 v159, 0")
        self.nst = 0
    def stamp(self):
        if not Asm.STAMP: return
        self("s_memtime s[92:93]")
        self("s_waitcnt lgkmcnt(0)")
        self("v_mov_b32 v158, s92")
        self(f"buffer_store_dword v158, v159, s[88:91], s94 offen offset:{4*self.nst}")
        self.nst += 1
    def text(self):
        return "\n".join(self.lines) + "\n"

def magic_div(d, maxval):
    for sh in range(8, 32):
        m = (1 << sh) // d + 1
        if m >= (1 << 24):
            continue
        ok = all(((x * m) >> sh) == x // d for x in range(maxval + 1))
        if ok:
            return m, sh
    raise ValueError("no magic")

def vr(base, n=1):
    return f"v{base}" if n == 1 else f"v[{base}:{base+n-1}]"
def sr(base, n=1):
    return f"s{base}" if n == 1 else f"s[{base}:{base+n-1}]"
```

```python
from asmlib import *
KA = dict(x=0, wqkv=8, wphi=16, wo=24, bx=32, w1=40, w2=48, out=56, dbg=64, ws=72)
WS_PHIQ = 0x4000000
WS_KV   = 0x1000000
WS_H    = 0x1400000
WS_S    = 0x1A00000
WS_KVP  = 0x2400000
ACT_BYTES = 2048*640*2
kernels = []

def load_ptrs(a):
    a("s_load_dwordx16 s[64:79], s[0:1], 0")
    a("s_load_dwordx4 s[80:83], s[0:1], 64")
def ptr_reg(name):
    return 64 + KA[name] // 4
def srd(a, sdst, src, nbytes):
    if src[0] == 'in':
        p = ptr_reg(src[1])
        a(f"s_mov_b32 s{sdst}, s{p}")
        a(f"s_and_b32 s{sdst+1}, s{p+1}, 0xffff")
    else:
        p = ptr_reg('ws')
        a(f"s_add_u32 s{sdst}, s{p}, {src[1]}")
        a(f"s_addc_u32 s{sdst+1}, s{p+1}, 0")
        a(f"s_and_b32 s{sdst+1}, s{sdst+1}, 0xffff")
    a(f"s_mov_b32 s{sdst+2}, {nbytes}")
    a(f"s_mov_b32 s{sdst+3}, 0x00020000")
def bf16_round(a, vdst, vsrc):
    a(f"v_cvt_pk_bf16_f32 v{vdst}, v{vsrc}, v{vsrc}")
    a(f"v_lshlrev_b32 v{vdst}, 16, v{vdst}")

def emit(path):
    out = []
    for (name, grid, block, lds, nv, na, text) in kernels:
        out.append(f"; @launch kernel={name} grid=({grid[0]},{grid[1]},{grid[2]}) block=({block[0]},{block[1]},{block[2]}) lds={lds}")
    out.append('.amdgcn_target "amdgcn-amd-amdhsa--gfx950"')
    out.append(".text")
    for (name, grid, block, lds, nv, na, text) in kernels:
        out += [f".globl {name}", ".p2align 8", f".type {name},@function", f"{name}:", text]
    out.append('.section .rodata,"a"')
    for (name, grid, block, lds, nv, na, text) in kernels:
        if Asm.STAMP: nv = max(nv, 160)
        nv4 = (nv + 3) // 4 * 4
        out += [".p2align 6", f".amdhsa_kernel {name}", f"  .amdhsa_next_free_vgpr {nv4 + na}", "  .amdhsa_next_free_sgpr 96",
                f"  .amdhsa_accum_offset {nv4}", "  .amdhsa_group_segment_fixed_size 0", "  .amdhsa_kernarg_size 80",
                "  .amdhsa_user_sgpr_count 2", "  .amdhsa_user_sgpr_kernarg_segment_ptr 1",
                "  .amdhsa_system_sgpr_workgroup_id_x 1", ".end_amdhsa_kernel"]
    open(path, "w").write("\n".join(out) + "\n")

class Cfg:
    def __init__(self, MT, NT, WGM, WGN, K, lda, ldb, S, lds_base=0, a_res=None):
        self.MT, self.NT, self.WGM, self.WGN, self.K = MT, NT, WGM, WGN, K
        self.WM, self.WN = MT // WGM, NT // WGN
        self.TM, self.TN = self.WM // 16, self.WN // 16
        self.lda, self.ldb, self.S = lda, ldb, S
        self.NK = K // 64
        self.a_res = a_res
        self.ABUF = MT * 128 if a_res is None else 0
        self.RB = NT * 2
        self.BBUF = 64 * self.RB
        self.STAGE = self.ABUF + self.BBUF
        self.lds_base = lds_base
        self.lds_end = lds_base + S * self.STAGE
    def slot(self, kc):
        return self.lds_base + (kc % self.S) * self.STAGE

def compute_role(a, c, nbar_hook=None):
    TM, TN = c.TM, c.TN
    vXr, vWr, vT = 2, 4, 8
    XF = 16
    WF = XF + 2 * TM * 4
    ACC = WF + 2 * TN * 4
    nacc = TM * TN * 4
    T = vT
    if c.WGN == 1:
        a(f"s_mul_i32 s27, s26, {c.WM}")
        a("s_mov_b32 s28, 0")
    else:
        a("s_lshr_b32 s27, s26, 1")
        a("s_and_b32 s28, s26, 1")
        a(f"s_mul_i32 s27, s27, {c.WM}")
        a(f"s_mul_i32 s28, s28, {c.WN}")
    a(f"v_and_b32 v{T}, 15, v1")
    a(f"v_lshrrev_b32 v{T+1}, 4, v1")
    if c.a_res is None:
        a(f"v_lshrrev_b32 v{T+2}, 1, v1")
        a(f"v_and_b32 v{T+2}, 7, v{T+2}")
        a(f"v_xor_b32 v{T+2}, v{T+2}, v{T+1}")
        a(f"v_lshlrev_b32 v{T+2}, 4, v{T+2}")
        a(f"v_add_u32 v{T+3}, s27, v{T}")
        a(f"v_lshlrev_b32 v{T+3}, 7, v{T+3}")
        a(f"v_add_u32 v{vXr}, v{T+3}, v{T+2}")
        a(f"v_xor_b32 v{vXr+1}, 64, v{vXr}")
    else:
        off, rs = c.a_res
        a(f"v_add_u32 v{T+3}, s27, v{T}")
        a(f"v_mul_u32_u24 v{T+3}, {rs}, v{T+3}")
        a(f"v_lshl_add_u32 v{vXr}, v{T+1}, 4, v{T+3}")
        a(f"v_add_u32 v{vXr}, {off}, v{vXr}")
    a(f"v_lshrrev_b32 v{T+2}, 2, v{T}")
    a(f"v_and_b32 v{T+3}, 3, v1")
    if c.NT == 128:
        a(f"v_lshl_add_u32 v{T+4}, v{T+1}, 3, v{T+2}")
        a(f"v_lshlrev_b32 v{T+4}, 8, v{T+4}")
        a(f"v_and_b32 v{T+5}, 1, v{T+3}")
        a(f"v_lshl_add_u32 v{T+4}, v{T+5}, 3, v{T+4}")
        a(f"v_lshrrev_b32 v{T+5}, 1, v{T+3}")
        a(f"v_lshl_add_u32 v{T+4}, v{T+5}, 4, v{T+4}")
        a(f"v_and_b32 v{T+5}, 1, v{T+1}")
        a("s_lshr_b32 s29, s28, 6")
        a(f"v_xor_b32 v{T+5}, s29, v{T+5}")
        a(f"v_lshl_add_u32 v{T+4}, v{T+5}, 7, v{T+4}")
        for nt in range(TN):
            a(f"v_xor_b32 v{T+5}, {nt}, v{T+2}")
            a(f"v_lshl_add_u32 v{vWr+nt}, v{T+5}, 5, v{T+4}")
    else:
        a(f"v_and_b32 v{T+4}, 1, v{T+1}")
        a(f"v_lshlrev_b32 v{T+4}, 2, v{T+4}")
        a(f"v_add_u32 v{T+4}, v{T+4}, v{T+2}")
        a(f"v_lshrrev_b32 v{T+5}, 1, v{T+1}")
        a(f"v_lshl_add_u32 v{T+4}, v{T+5}, 4, v{T+4}")
        a(f"v_mul_u32_u24 v{T+4}, {c.RB}, v{T+4}")
        a("s_lshl_b32 s29, s28, 1")
        a(f"v_lshl_add_u32 v{T+5}, v{T+3}, 3, v{T+4}")
        a(f"v_add_u32 v{vWr}, s29, v{T+5}")
    for i in range(nacc):
        a(f"v_mov_b32 v{ACC+i}, 0")
    def reads(kc, ks):
        slot = c.slot(kc)
        if c.a_res is None:
            a(f"v_add_u32 v{T}, {slot}, v{vXr+ks}")
        nw = TN if c.NT == 128 else 1
        for i in range(nw):
            a(f"v_add_u32 v{T+1+i}, {slot + c.ABUF}, v{vWr+i}")
        for mt in range(TM):
            r = XF + (ks * TM + mt) * 4
            if c.a_res is None:
                a(f"ds_read_b128 v[{r}:{r+3}], v{T} offset:{mt*2048}")
            else:
                a(f"ds_read_b128 v[{r}:{r+3}], v{vXr} offset:{mt*16*c.a_res[1] + kc*128 + ks*64}")
        for nt in range(TN):
            for jh in range(2):
                r = WF + (ks * TN + nt) * 4 + jh * 2
                if c.NT == 128:
                    a(f"ds_read_b64_tr_b16 v[{r}:{r+1}], v{T+1+nt} offset:{(32*ks + 4*jh)*256}")
                else:
                    a(f"ds_read_b64_tr_b16 v[{r}:{r+1}], v{T+1} offset:{(32*ks + 8*jh)*c.RB + nt*32}")
    def mfmas(ks):
        for mt in range(TM):
            for nt in range(TN):
                xa = XF + (ks * TM + mt) * 4
                wa = WF + (ks * TN + nt) * 4
                cc = ACC + (mt * TN + nt) * 4
                a(f"v_mfma_f32_16x16x32_bf16 v[{cc}:{cc+3}], v[{wa}:{wa+3}], v[{xa}:{xa+3}], v[{cc}:{cc+3}]")
    nrd = TM + 2 * TN
    a("s_barrier")
    a.stamp()
    reads(0, 0)
    for kc in range(c.NK):
        reads(kc, 1)
        a(f"s_waitcnt lgkmcnt({nrd})")
        mfmas(0)
        a("s_waitcnt lgkmcnt(0)")
        if kc + 1 < c.NK:
            a("s_barrier")
            if kc < 3 or kc == c.NK - 2: a.stamp()
            reads(kc + 1, 0)
        mfmas(1)
    a("s_nop 15")
    return ACC, ACC + nacc

def bload_setup(a, c, lw_sgpr, nlw, gather_hp=None, T=16, vBo=2):
    nins = c.BBUF // 1024
    per = (nins + nlw - 1) // nlw
    a("s_lshl_b32 s30, s25, 1")
    a(f"s_mov_b32 s31, {c.ldb}")
    if c.NT == 128:
        for jj in range(per):
            a(f"s_mul_i32 s29, s{lw_sgpr}, 1")
            a(f"s_add_u32 s29, s29, {nlw*jj}")
            a("s_lshr_b32 s32, s29, 1")
            a("s_and_b32 s32, s32, 1")
            a("s_lshl_b32 s32, s32, 2")
            a(f"v_lshrrev_b32 v{T}, 4, v1")
            a(f"v_add_u32 v{T+1}, s32, v{T}")
            a(f"v_lshlrev_b32 v{T+1}, 1, v{T+1}")
            a(f"v_and_b32 v{T+2}, 15, v1")
            a(f"v_xor_b32 v{T+1}, v{T+1}, v{T+2}")
            if gather_hp is not None:
                a(f"v_min_u32 v{T+1}, 14, v{T+1}")
                a(f"v_mul_u32_u24 v{T+2}, 205, v{T+1}")
                a(f"v_lshrrev_b32 v{T+2}, 10, v{T+2}")
                a(f"v_mul_u32_u24 v{T+3}, 5, v{T+2}")
                a(f"v_sub_u32 v{T+3}, v{T+1}, v{T+3}")
                a(f"v_lshlrev_b32 v{T+3}, 4, v{T+3}")
                a(f"v_mul_u32_u24 v{T+2}, 1280, v{T+2}")
                a(f"s_mul_i32 s33, s{gather_hp}, 80")
                a(f"v_add3_u32 v{T+1}, v{T+2}, v{T+3}, s33")
            else:
                a(f"v_lshlrev_b32 v{T+1}, 4, v{T+1}")
                a(f"v_add_u32 v{T+1}, s30, v{T+1}")
            a("s_lshl_b32 s29, s29, 2")
            a(f"v_add_u32 v{T}, s29, v{T}")
            a(f"v_mul_lo_u32 v{T}, v{T}, s31")
            a(f"v_add_u32 v{vBo+jj}, v{T}, v{T+1}")
    else:
        cpr = c.RB // 16
        md, sd = magic_div(cpr, 700)
        for jj in range(per):
            a(f"s_add_u32 s29, s{lw_sgpr}, {nlw*jj}")
            a(f"s_cmp_ge_u32 s29, {nins}")
            a(f"s_cselect_b32 s29, s{lw_sgpr}, s29")
            a("s_lshl_b32 s29, s29, 6")
            a(f"v_add_u32 v{T}, s29, v1")
            a(f"v_mul_u32_u24 v{T+1}, {md}, v{T}")
            a(f"v_lshrrev_b32 v{T+1}, {sd}, v{T+1}")
            a(f"v_mul_u32_u24 v{T+2}, {cpr}, v{T+1}")
            a(f"v_sub_u32 v{T+2}, v{T}, v{T+2}")
            a(f"v_and_b32 v{T+3}, 0x33, v{T+1}")
            a(f"v_and_b32 v{T+4}, 4, v{T+1}")
            a(f"v_lshlrev_b32 v{T+4}, 1, v{T+4}")
            a(f"v_or_b32 v{T+3}, v{T+3}, v{T+4}")
            a(f"v_and_b32 v{T+4}, 8, v{T+1}")
            a(f"v_lshrrev_b32 v{T+4}, 1, v{T+4}")
            a(f"v_or_b32 v{T+3}, v{T+3}, v{T+4}")
            a(f"v_mul_lo_u32 v{T+3}, v{T+3}, s31")
            a(f"v_lshlrev_b32 v{T+2}, 4, v{T+2}")
            a(f"v_add3_u32 v{vBo+jj}, v{T+3}, v{T+2}, s30")
    return per

def bload_issue(a, c, kc, lw_sgpr, nlw, per, vBo=2, srdB=12):
    nins = c.BBUF // 1024
    slot = c.slot(kc) + c.ABUF
    for jj in range(per):
        a(f"s_add_u32 s29, s{lw_sgpr}, {nlw*jj}")
        if nlw * jj + nlw > nins:
            a(f"s_cmp_ge_u32 s29, {nins}")
            a(f"s_cselect_b32 s29, s{lw_sgpr}, s29")
        a("s_lshl_b32 m0, s29, 10")
        a(f"s_add_u32 m0, m0, {slot}")
        a("s_nop 0")
        a(f"buffer_load_dwordx4 v{vBo+jj}, s[{srdB}:{srdB+3}], 0 offen lds")
        a(f"v_add_u32 v{vBo+jj}, {64*c.ldb}, v{vBo+jj}")

def aload_setup(a, c, lw_sgpr, nlw, T=16, vAo=10):
    nins = c.ABUF // 1024
    per = nins // nlw
    for jj in range(per):
        a(f"s_add_u32 s29, s{lw_sgpr}, {nlw*jj}")
        a("s_and_b32 s32, s29, 1")
        a("s_lshl_b32 s32, s32, 2")
        a(f"v_lshrrev_b32 v{T}, 3, v1")
        a(f"v_lshrrev_b32 v{T+1}, 4, v1")
        a(f"v_add_u32 v{T+1}, s32, v{T+1}")
        a(f"v_and_b32 v{T+1}, 7, v{T+1}")
        a(f"v_and_b32 v{T+2}, 7, v1")
        a(f"v_xor_b32 v{T+1}, v{T+1}, v{T+2}")
        a(f"v_lshlrev_b32 v{T+1}, 4, v{T+1}")
        a("s_lshl_b32 s29, s29, 3")
        a("s_add_u32 s29, s29, s24")
        a(f"v_add_u32 v{T}, s29, v{T}")
        a(f"s_mov_b32 s30, {c.lda}")
        a(f"v_mul_lo_u32 v{T}, v{T}, s30")
        a(f"v_add_u32 v{vAo+jj}, v{T}, v{T+1}")
    return per

def aload_issue(a, c, kc, lw_sgpr, nlw, per, vAo=10, srdA=8):
    slot = c.slot(kc)
    for jj in range(per):
        a(f"s_add_u32 s29, s{lw_sgpr}, {nlw*jj}")
        a("s_lshl_b32 m0, s29, 10")
        a(f"s_add_u32 m0, m0, {slot}")
        a("s_nop 0")
        a(f"buffer_load_dwordx4 v{vAo+jj}, s[{srdA}:{srdA+3}], 0 offen lds")
        a(f"v_add_u32 v{vAo+jj}, 128, v{vAo+jj}")

def dma_loader_role(a, c, lw_sgpr, nlw, do_a, do_b, gather_hp=None):
    perA = aload_setup(a, c, lw_sgpr, nlw) if do_a else 0
    perB = bload_setup(a, c, lw_sgpr, nlw, gather_hp) if do_b else 0
    D = perA + perB
    def issue(kc):
        if do_a: aload_issue(a, c, kc, lw_sgpr, nlw, perA)
        if do_b: bload_issue(a, c, kc, lw_sgpr, nlw, perB)
    return issue, D

def dma_loader_loop(a, c, issue, D, pre_issued=False):
    S, NK = c.S, c.NK
    if not pre_issued:
        for kc in range(min(S - 1, NK)):
            issue(kc)
    for kc in range(NK):
        a(f"s_waitcnt vmcnt({min(63, D * min(S - 2, NK - 1 - kc))})")
        a("s_barrier")
        if kc + S - 1 < NK:
            issue(kc + S - 1)

def stats_role(a, srdX, lda, stats_off, wave_sgpr):
    X = 16
    a("v_lshrrev_b32 v2, 2, v1")
    a("v_and_b32 v3, 3, v1")
    a(f"s_lshl_b32 s29, s{wave_sgpr}, 4")
    a("v_add_u32 v4, s29, v2")
    a("v_add_u32 v5, s24, v4")
    a(f"s_mov_b32 s30, {lda}")
    a("v_mul_lo_u32 v5, v5, s30")
    a("v_mul_u32_u24 v6, 320, v3")
    a("v_add_u32 v5, v5, v6")
    for k in range(20):
        a(f"buffer_load_dwordx4 v[{X+4*k}:{X+4*k+3}], v5, s[{srdX}:{srdX+3}], 0 offen offset:{16*k}")
    a("s_waitcnt vmcnt(0)")
    for j in range(4):
        a(f"v_mov_b32 v{100+j}, 0")
    for d in range(80):
        a(f"v_lshlrev_b32 v{104+(d%2)*2}, 16, v{X+d}")
        a(f"v_and_b32 v{105+(d%2)*2}, 0xffff0000, v{X+d}")
        a(f"v_add_f32 v{100+(d%2)*2}, v{100+(d%2)*2}, v{104+(d%2)*2}")
        a(f"v_add_f32 v{101+(d%2)*2}, v{101+(d%2)*2}, v{105+(d%2)*2}")
    a("v_add_f32 v100, v100, v101")
    a("v_add_f32 v102, v102, v103")
    a("v_add_f32 v7, v100, v102")
    for pat in ["quad_perm:[1,0,3,2]", "quad_perm:[2,3,0,1]"]:
        a("s_nop 1")
        a(f"v_add_f32_dpp v7, v7, v7 {pat} row_mask:0xf bank_mask:0xf")
    a("v_mul_f32 v7, 0x3acccccd, v7")
    for j in range(4):
        a(f"v_mov_b32 v{100+j}, 0")
    for d in range(80):
        a(f"v_lshlrev_b32 v{104+(d%2)*2}, 16, v{X+d}")
        a(f"v_and_b32 v{105+(d%2)*2}, 0xffff0000, v{X+d}")
        a(f"v_sub_f32 v{104+(d%2)*2}, v{104+(d%2)*2}, v7")
        a(f"v_sub_f32 v{105+(d%2)*2}, v{105+(d%2)*2}, v7")
        a(f"v_fmac_f32 v{100+(d%2)*2}, v{104+(d%2)*2}, v{104+(d%2)*2}")
        a(f"v_fmac_f32 v{101+(d%2)*2}, v{105+(d%2)*2}, v{105+(d%2)*2}")
    a("v_add_f32 v100, v100, v101")
    a("v_add_f32 v102, v102, v103")
    a("v_add_f32 v10, v100, v102")
    for pat in ["quad_perm:[1,0,3,2]", "quad_perm:[2,3,0,1]"]:
        a("s_nop 1")
        a(f"v_add_f32_dpp v10, v10, v10 {pat} row_mask:0xf bank_mask:0xf")
    a("v_mul_f32 v10, 0x3acccccd, v10")
    bf16_round(a, 7, 7)
    bf16_round(a, 10, 10)
    a("v_add_f32 v10, 0x3727c5ac, v10")
    bf16_round(a, 10, 10)
    a("v_sqrt_f32 v10, v10")
    a("s_nop 0")
    bf16_round(a, 10, 10)
    a("v_rcp_f32 v11, v10")
    a("v_lshlrev_b32 v4, 3, v4")
    a("s_nop 0")
    a("v_mov_b32 v10, v7")
    a(f"v_add_u32 v4, {stats_off}, v4")
    a("ds_write_b64 v4, v[10:11]")
    a("s_waitcnt lgkmcnt(0)")

def norm_role(a, c, srdX, stats_off):
    S, NK = c.S, c.NK
    R = 32
    a("v_subrev_u32 v2, 256, v0")
    a("v_lshrrev_b32 v3, 3, v2")
    a("v_and_b32 v4, 7, v2")
    a("v_add_u32 v5, s24, v3")
    a(f"s_mov_b32 s30, {c.lda}")
    a("v_mul_lo_u32 v5, v5, s30")
    a("v_lshl_add_u32 v5, v4, 4, v5")
    for i in range(1, 4):
        a(f"v_add_u32 v{5+i}, {i*32*c.lda}, v5")
    a("v_lshrrev_b32 v9, 1, v3")
    a("v_and_b32 v9, 7, v9")
    a("v_xor_b32 v9, v9, v4")
    a("v_lshlrev_b32 v9, 4, v9")
    a("v_lshl_add_u32 v9, v3, 7, v9")
    a("v_lshlrev_b32 v10, 3, v3")
    a(f"v_add_u32 v10, {stats_off}, v10")
    for i in range(4):
        a(f"ds_read_b64 v[{16+2*i}:{17+2*i}], v10 offset:{i*32*8}")
    def rawload(kc):
        for i in range(4):
            r = R + (kc % 2) * 16 + 4 * i
            a(f"buffer_load_dwordx4 v[{r}:{r+3}], v{5+i}, s[{srdX}:{srdX+3}], 0 offen offset:{kc*128}")
    def produce(kc, nxt):
        a(f"s_waitcnt vmcnt({4 if nxt else 0})")
        for i in range(4):
            for d in range(4):
                r = R + (kc % 2) * 16 + 4 * i + d
                a(f"v_lshlrev_b32 v11, 16, v{r}")
                a(f"v_and_b32 v12, 0xffff0000, v{r}")
                a(f"v_sub_f32 v11, v11, v{16+2*i}")
                a(f"v_sub_f32 v12, v12, v{16+2*i}")
                a(f"v_cvt_pk_bf16_f32 v13, v11, v12")
                a("v_lshlrev_b32 v11, 16, v13")
                a("v_and_b32 v12, 0xffff0000, v13")
                a(f"v_mul_f32 v11, v11, v{17+2*i}")
                a(f"v_mul_f32 v12, v12, v{17+2*i}")
                a(f"v_cvt_pk_bf16_f32 v{r}, v11, v12")
            r = R + (kc % 2) * 16 + 4 * i
            a(f"v_add_u32 v14, {c.slot(kc) + i*4096}, v9")
            a(f"ds_write_b128 v14, v[{r}:{r+3}]")
    rawload(0)
    rawload(1)
    a("s_waitcnt lgkmcnt(0)")
    nxt_load = 2
    for kc in range(min(S - 1, NK)):
        produce(kc, kc + 1 < NK)
        if nxt_load < NK:
            a("s_waitcnt lgkmcnt(0)")
            rawload(nxt_load); nxt_load += 1
    for b in range(NK):
        a("s_waitcnt lgkmcnt(0)")
        a("s_barrier")
        kc = b + S - 1
        if kc < NK:
            produce(kc, kc + 1 < NK)
            if nxt_load < NK:
                a("s_waitcnt lgkmcnt(0)")
                rawload(nxt_load); nxt_load += 1
```

```python
import sys
from g5core import *
LOG2E = 0x3fb8aa3b

def wave_id(a):
    a("v_and_b32 v1, 63, v0")
    a("v_lshrrev_b32 v2, 6, v0")
    a("s_nop 0")
    a("v_readfirstlane_b32 s26, v2")
    a("s_nop 1")

def xmap(a, ntm, ntn, bm, bn):
    nbn = ntn // bn
    a("s_and_b32 s29, s2, 7")
    a("s_lshr_b32 s30, s2, 3")
    md, sd = magic_div(nbn, 8)
    a(f"s_mul_i32 s31, s29, {md}")
    a(f"s_lshr_b32 s31, s31, {sd}")
    a(f"s_mul_i32 s32, s31, {nbn}")
    a("s_sub_u32 s32, s29, s32")
    md, sd = magic_div(bn, 64)
    a(f"s_mul_i32 s33, s30, {md}")
    a(f"s_lshr_b32 s33, s33, {sd}")
    a(f"s_mul_i32 s34, s33, {bn}")
    a("s_sub_u32 s34, s30, s34")
    a(f"s_mul_i32 s24, s31, {bm}")
    a("s_add_u32 s24, s24, s33")
    a(f"s_mul_i32 s25, s32, {bn}")
    a("s_add_u32 s25, s25, s34")

def acc_to_lds(a, c, ACC, CS, base, epi, T=8):
    a(f"v_and_b32 v{T}, 15, v1")
    a(f"v_lshrrev_b32 v{T+1}, 4, v1")
    a(f"v_add_u32 v{T}, s27, v{T}")
    a(f"v_mul_u32_u24 v{T}, {CS}, v{T}")
    a(f"v_lshlrev_b32 v{T+1}, 3, v{T+1}")
    a("s_lshl_b32 s29, s28, 1")
    a(f"v_add3_u32 v{T}, v{T}, v{T+1}, s29")
    for mt in range(c.TM):
        for nt in range(c.TN):
            cc = ACC + (mt * c.TN + nt) * 4
            if epi == 'silu':
                for i in range(4):
                    bf16_round(a, cc + i, cc + i)
                    a(f"v_mul_f32 v{T+1+i}, 0xbfb8aa3b, v{cc+i}")
                for i in range(4):
                    a(f"v_exp_f32 v{T+1+i}, v{T+1+i}")
                a("s_nop 0")
                for i in range(4):
                    a(f"v_add_f32 v{T+1+i}, 1.0, v{T+1+i}")
                for i in range(4):
                    a(f"v_rcp_f32 v{T+1+i}, v{T+1+i}")
                a("s_nop 0")
                for i in range(4):
                    a(f"v_mul_f32 v{cc+i}, v{cc+i}, v{T+1+i}")
            a(f"v_cvt_pk_bf16_f32 v{cc}, v{cc}, v{cc+1}")
            a(f"v_cvt_pk_bf16_f32 v{cc+1}, v{cc+2}, v{cc+3}")
            a(f"ds_write_b64 v{T}, v[{cc}:{cc+1}] offset:{base + mt*16*CS + nt*32}")
    a("s_waitcnt lgkmcnt(0)")

def store_tile(a, c, CS, base, ldc, N, nthreads, residual, T=8, R=16):
    cpr = c.NT // 8
    nch = c.MT * cpr
    npass = (nch + nthreads - 1) // nthreads
    md, sd = magic_div(cpr, nch + nthreads)
    a(f"s_mul_i32 s29, s24, {ldc}")
    a("s_lshl_b32 s30, s25, 1")
    a("s_add_u32 s29, s29, s30")
    for i in range(npass):
        r = R + i * 12
        a(f"v_add_u32 v{T}, {nthreads*i}, v0")
        a(f"v_mul_u32_u24 v{T+1}, {md}, v{T}")
        a(f"v_lshrrev_b32 v{T+1}, {sd}, v{T+1}")
        a(f"v_mul_u32_u24 v{T+2}, {cpr}, v{T+1}")
        a(f"v_sub_u32 v{T+2}, v{T}, v{T+2}")
        a(f"v_mul_u32_u24 v{T+3}, {CS}, v{T+1}")
        a(f"v_lshl_add_u32 v{T+3}, v{T+2}, 4, v{T+3}")
        a(f"ds_read_b128 v[{r}:{r+3}], v{T+3} offset:{base}")
        a(f"v_mul_u32_u24 v{T+3}, {ldc}, v{T+1}")
        a(f"v_lshl_add_u32 v{r+8}, v{T+2}, 4, v{T+3}")
        a(f"v_lshlrev_b32 v{T+4}, 3, v{T+2}")
        a(f"v_add_u32 v{T+4}, s25, v{T+4}")
        a(f"v_cmp_gt_u32 vcc, {nch}, v{T}")
        a("s_mov_b64 s[34:35], vcc")
        a(f"v_cmp_gt_u32 vcc, {N}, v{T+4}")
        a("s_and_b64 s[34:35], s[34:35], vcc")
        a(f"v_cndmask_b32 v{r+8}, -1, v{r+8}, s[34:35]")
        if residual:
            a(f"buffer_load_dwordx4 v[{r+4}:{r+7}], v{r+8}, s[20:23], s29 offen")
    a("s_waitcnt vmcnt(0) lgkmcnt(0)")
    for i in range(npass):
        r = R + i * 12
        if residual:
            for j in range(4):
                a(f"v_lshlrev_b32 v{T}, 16, v{r+j}")
                a(f"v_and_b32 v{T+1}, 0xffff0000, v{r+j}")
                a(f"v_lshlrev_b32 v{T+2}, 16, v{r+4+j}")
                a(f"v_and_b32 v{T+3}, 0xffff0000, v{r+4+j}")
                a(f"v_add_f32 v{T}, v{T}, v{T+2}")
                a(f"v_add_f32 v{T+1}, v{T+1}, v{T+3}")
                a(f"v_cvt_pk_bf16_f32 v{r+j}, v{T}, v{T+1}")
        a(f"buffer_store_dwordx4 v[{r}:{r+3}], v{r+8}, s[16:19], s29 offen")
    return R + npass * 12

def ln_gemm_body(a, name, c, srdX, stats_off, gather_hp):
    a("s_cmp_ge_u32 s26, 8")
    a(f"s_cbranch_scc1 {name}_bl")
    stats_role(a, srdX, c.lda, stats_off, 26)
    a.stamp()
    a("s_barrier")
    a("s_cmp_ge_u32 s26, 4")
    a(f"s_cbranch_scc1 {name}_nm")
    ACC, vend = compute_role(a, c)
    a(f"s_branch {name}_epi")
    a.label(f"{name}_nm")
    norm_role(a, c, srdX, stats_off)
    a(f"s_branch {name}_epi")
    a.label(f"{name}_bl")
    a("s_sub_u32 s37, s26, 8")
    issue, D = dma_loader_role(a, c, 37, 2, False, True, gather_hp)
    for kc in range(c.S - 1):
        issue(kc)
    a("s_barrier")
    dma_loader_loop(a, c, issue, D, pre_issued=True)
    a.label(f"{name}_epi")
    a.nst = 20; a.stamp()
    return ACC, vend

def gen_k4(name):
    a = Asm()
    c = Cfg(128, 128, 2, 2, 640, 1280, 3456, 4)
    stats_off = c.lds_end
    a("s_cmp_ge_u32 s2, 224")
    a(f"s_cbranch_scc1 {name}_end")
    load_ptrs(a)
    wave_id(a)
    a("s_waitcnt lgkmcnt(0)")
    a.stamp_init(); a.stamp()
    srd(a, 8, ('ws', WS_H), ACT_BYTES)
    srd(a, 12, ('in', 'w1'), 640 * 3456)
    srd(a, 16, ('ws', WS_S), 2048 * 3456)
    xmap(a, 16, 14, 2, 14)
    a("s_mul_i32 s24, s24, 128")
    a("s_mul_i32 s25, s25, 128")
    ACC, vend = ln_gemm_body(a, name, c, 8, stats_off, None)
    CS = 272
    a("s_barrier")
    a("s_cmp_ge_u32 s26, 4")
    a(f"s_cbranch_scc1 {name}_e2")
    acc_to_lds(a, c, ACC, CS, 0, 'silu')
    a.label(f"{name}_e2")
    a("s_barrier")
    nv = store_tile(a, c, CS, 0, 3456, 1728, 640, False)
    a("s_waitcnt vmcnt(0)")
    a.stamp()
    a.label(f"{name}_end")
    a("s_endpgm")
    kernels.append((name, (224,1,1), (640,1,1), stats_off + 1024, max(vend, nv, 100), 0, a.text()))

def gen_k5(name):
    a = Asm()
    c = Cfg(64, 80, 4, 1, 1728, 3456, 1280, 6)
    a("s_cmp_ge_u32 s2, 256")
    a(f"s_cbranch_scc1 {name}_end")
    load_ptrs(a)
    wave_id(a)
    a("s_waitcnt lgkmcnt(0)")
    a.stamp_init(); a.stamp()
    srd(a, 8, ('ws', WS_S), 2048 * 3456)
    srd(a, 12, ('in', 'w2'), 1728 * 1280)
    srd(a, 16, ('in', 'out'), ACT_BYTES)
    srd(a, 20, ('ws', WS_H), ACT_BYTES)
    xmap(a, 32, 8, 4, 8)
    a("s_mul_i32 s24, s24, 64")
    a("s_mul_i32 s25, s25, 80")
    a("s_cmp_ge_u32 s26, 4")
    a(f"s_cbranch_scc1 {name}_ld")
    ACC, vend = compute_role(a, c)
    a(f"s_branch {name}_epi")
    a.label(f"{name}_ld")
    a("s_sub_u32 s37, s26, 4")
    issue, D = dma_loader_role(a, c, 37, 4, True, True)
    dma_loader_loop(a, c, issue, D)
    a.label(f"{name}_epi")
    a.nst = 20; a.stamp()
    CS = 176
    a("s_barrier")
    a("s_cmp_ge_u32 s26, 4")
    a(f"s_cbranch_scc1 {name}_e2")
    acc_to_lds(a, c, ACC, CS, 0, 'store')
    a.label(f"{name}_e2")
    a("s_barrier")
    nv = store_tile(a, c, CS, 0, 1280, 640, 512, True)
    a("s_waitcnt vmcnt(0)")
    a.stamp()
    a.label(f"{name}_end")
    a("s_endpgm")
    kernels.append((name, (256,1,1), (512,1,1), c.lds_end, max(vend, nv), 0, a.text()))


WS_KVF = 0x1000000
def gen_k1(name):
    a = Asm()
    c = Cfg(128, 128, 2, 2, 640, 1280, 3840, 4)
    stats_off = c.lds_end
    TS = 272; PS = 176; KS = 160
    WP0 = 0; T0 = 4096
    PQ0 = T0 + 128 * TS + 64
    PK0 = PQ0 + 128 * PS + 64
    FLAG = PK0 + 128 * KS + 256
    a("s_cmp_ge_u32 s2, 256")
    a(f"s_cbranch_scc1 {name}_end")
    load_ptrs(a)
    wave_id(a)
    a("s_waitcnt lgkmcnt(0)")
    a.stamp_init(); a.stamp()
    srd(a, 8, ('in', 'x'), ACT_BYTES)
    srd(a, 12, ('in', 'wqkv'), 640 * 3840)
    srd(a, 16, ('ws', WS_PHIQ), 128 * 32 * 2048)
    srd(a, 20, ('in', 'wphi'), 32 * 800)
    srd(a, 44, ('ws', WS_KVP), 16 * 32 * 8192)
    a("s_and_b32 s29, s2, 7")
    a("s_lshr_b32 s30, s2, 3")
    a("s_lshl_b32 s24, s29, 1")
    a("s_lshr_b32 s31, s30, 4")
    a("s_add_u32 s24, s24, s31")
    a("s_mov_b32 s41, s24")
    a("s_and_b32 s36, s30, 15")
    a("s_mov_b32 s25, 0")
    a("s_mul_i32 s24, s24, 128")
    ACC, vend = ln_gemm_body(a, name, c, 8, stats_off, 36)
    a("s_mul_i32 s37, s36, 1600")
    a("v_lshlrev_b32 v3, 1, v0")
    a("buffer_load_ushort v150, v3, s[20:23], s37 offen")
    a("buffer_load_ushort v151, v3, s[20:23], s37 offen offset:800")
    a("s_barrier")
    a.stamp()
    a("v_lshlrev_b32 v2, 3, v0")
    a("v_mov_b32 v4, 0")
    a("v_mov_b32 v5, 0")
    a("v_cmp_gt_u32 vcc, 512, v0")
    a("s_and_saveexec_b64 s[30:31], vcc")
    a(f"ds_write_b64 v2, v[4:5] offset:{WP0}")
    a("s_mov_b64 exec, s[30:31]")
    a("s_cmp_ge_u32 s26, 4")
    a(f"s_cbranch_scc1 {name}_x1")
    acc_to_lds(a, c, ACC, TS, T0, 'store')
    a.label(f"{name}_x1")
    a("s_waitcnt lgkmcnt(0)")
    a("s_barrier")
    a.stamp()
    m20, s20 = magic_div(20, 700)
    a("s_waitcnt vmcnt(0)")
    a(f"v_mul_u32_u24 v3, {m20}, v0")
    a(f"v_lshrrev_b32 v3, {s20}, v3")
    a("v_mul_u32_u24 v4, 20, v3")
    a("v_sub_u32 v4, v0, v4")
    a("v_lshlrev_b32 v3, 6, v3")
    a("v_lshl_add_u32 v3, v4, 1, v3")
    a("v_cmp_gt_u32 vcc, 400, v0")
    a("s_and_saveexec_b64 s[30:31], vcc")
    a(f"ds_write_b16 v3, v150 offset:{WP0}")
    a(f"ds_write_b16 v3, v151 offset:{WP0 + 2048}")
    a("s_mov_b64 exec, s[30:31]")
    a("s_waitcnt lgkmcnt(0)")
    a("s_barrier")
    a.stamp()
    a("v_and_b32 v2, 15, v1")
    a("v_lshrrev_b32 v3, 4, v1")
    a("v_lshrrev_b32 v4, 2, v2")
    a("v_and_b32 v5, 3, v1")
    a("s_cmp_ge_u32 s26, 8")
    a(f"s_cbranch_scc1 {name}_x2")
    a("v_lshl_add_u32 v7, v3, 3, v4")
    a("v_lshlrev_b32 v7, 6, v7")
    a("v_lshl_add_u32 v7, v5, 3, v7")
    for hh in range(2):
        for mt in range(2):
            for jh in range(2):
                r = 64 + (hh * 2 + mt) * 4 + jh * 2
                a(f"ds_read_b64_tr_b16 v[{r}:{r+1}], v7 offset:{WP0 + hh*2048 + jh*256 + mt*32}")
    a("s_lshl_b32 s33, s26, 4")
    a("v_add_u32 v8, s33, v2")
    a(f"v_mul_u32_u24 v9, {TS}, v8")
    a("v_lshl_add_u32 v9, v3, 4, v9")
    a(f"v_mul_u32_u24 v10, {PS}, v8")
    a("v_lshl_add_u32 v10, v3, 3, v10")
    a("v_cmp_gt_u32 s[34:35], 16, v1")
    for sh in range(4):
        off = T0 + sh * 40
        a(f"ds_read_b64 v[{80+4*sh}:{81+4*sh}], v9 offset:{off}")
        a(f"ds_read_b64 v[{82+4*sh}:{83+4*sh}], v9 offset:{off+8}")
    a("s_waitcnt lgkmcnt(0)")
    for sh in range(4):
        hh = sh & 1
        for mt in range(2):
            wa = 64 + (hh * 2 + mt) * 4
            a(f"v_mfma_f32_16x16x32_bf16 v[{96+8*sh+4*mt}:{99+8*sh+4*mt}], v[{wa}:{wa+3}], v[{80+4*sh}:{83+4*sh}], 0")
    a("s_nop 7")
    for sh in range(4):
        for mt in range(2):
            cc = 96 + 8 * sh + 4 * mt
            a(f"v_cvt_pk_bf16_f32 v{cc}, v{cc}, v{cc+1}")
            a(f"v_cvt_pk_bf16_f32 v{cc+1}, v{cc+2}, v{cc+3}")
            if mt == 1:
                a("s_and_saveexec_b64 s[30:31], s[34:35]")
            a(f"ds_write_b64 v10, v[{cc}:{cc+1}] offset:{PQ0 + (sh*20 + 16*mt)*2}")
            if mt == 1:
                a("s_mov_b64 exec, s[30:31]")
    a.label(f"{name}_x2")
    a("s_waitcnt lgkmcnt(0)")
    a("s_barrier")
    a.stamp()
    a("s_cmp_ge_u32 s26, 8")
    a(f"s_cbranch_scc1 {name}_x3")
    a("v_lshrrev_b32 v8, 2, v0")
    a("v_and_b32 v9, 3, v0")
    a(f"v_mul_u32_u24 v10, {PS}, v8")
    a("v_mul_u32_u24 v11, 40, v9")
    a("v_add_u32 v10, v10, v11")
    for k in range(5):
        a(f"ds_read_b64 v[{16+2*k}:{17+2*k}], v10 offset:{PQ0 + 8*k}")
    a("v_and_b32 v13, 1, v9")
    a(f"v_mul_u32_u24 v12, {KS}, v8")
    a("v_mul_u32_u24 v14, 80, v13")
    a("v_add_u32 v12, v12, v14")
    a(f"v_add_u32 v12, {PK0}, v12")
    a("v_add_u32 v14, s24, v8")
    a("v_lshrrev_b32 v15, 4, v14")
    a("v_lshlrev_b32 v15, 5, v15")
    a("s_lshl_b32 s28, s36, 1")
    a("v_add3_u32 v15, v15, v13, s28")
    a("v_lshlrev_b32 v15, 11, v15")
    a("v_and_b32 v14, 15, v14")
    a("v_lshl_add_u32 v14, v14, 4, v15")
    a("s_waitcnt lgkmcnt(0)")
    for k in range(10):
        a(f"v_and_b32 v{33+2*k}, 0xffff0000, v{16+k}")
        a(f"v_lshlrev_b32 v{32+2*k}, 16, v{16+k}")
    a("v_max_f32 v28, v32, v33")
    a("v_min_f32 v29, v32, v33")
    a("v_max_f32 v30, v34, v35")
    a("v_min_f32 v31, v34, v35")
    for k in range(4, 20, 2):
        a(f"v_max_f32 v28, v28, v{32+k}")
        a(f"v_min_f32 v29, v29, v{32+k}")
        a(f"v_max_f32 v30, v30, v{33+k}")
        a(f"v_min_f32 v31, v31, v{33+k}")
    a("v_max_f32 v28, v28, v30")
    a("v_min_f32 v29, v29, v31")
    a(f"s_mov_b32 s38, {LOG2E}")
    for k in range(20):
        a(f"v_sub_f32 v{52+k}, v{32+k}, v28")
        a(f"v_sub_f32 v{72+k}, v29, v{32+k}")
    for k in range(20):
        a(f"v_mul_f32 v{52+k}, s38, v{52+k}")
        a(f"v_mul_f32 v{72+k}, s38, v{72+k}")
    for k in range(20):
        a(f"v_exp_f32 v{52+k}, v{52+k}")
        a(f"v_exp_f32 v{72+k}, v{72+k}")
    a("s_nop 0")
    a("v_add_f32 v28, v52, v53")
    a("v_add_f32 v29, v72, v73")
    a("v_add_f32 v30, v54, v55")
    a("v_add_f32 v31, v74, v75")
    for k in range(4, 20, 2):
        a(f"v_add_f32 v28, v28, v{52+k}")
        a(f"v_add_f32 v29, v29, v{72+k}")
        a(f"v_add_f32 v30, v30, v{53+k}")
        a(f"v_add_f32 v31, v31, v{73+k}")
    a("v_add_f32 v28, v28, v30")
    a("v_add_f32 v29, v29, v31")
    a("v_rcp_f32 v30, v28")
    a("v_rcp_f32 v31, v29")
    a("s_nop 0")
    for k in range(20):
        a(f"v_mul_f32 v{92+k}, v{52+k}, v30")
        a(f"v_mul_f32 v{112+k}, v{72+k}, v31")
    for k in range(20):
        a(f"v_fma_f32 v{52+k}, -v{92+k}, v28, v{52+k}")
        a(f"v_fma_f32 v{72+k}, -v{112+k}, v29, v{72+k}")
    for k in range(20):
        a(f"v_fma_f32 v{52+k}, v{52+k}, v30, v{92+k}")
        a(f"v_fma_f32 v{72+k}, v{72+k}, v31, v{112+k}")
    for k in range(20):
        src = 52 + 2 * k if k < 10 else 72 + 2 * (k - 10)
        a(f"v_cvt_pk_bf16_f32 v{16+k}, v{src}, v{src+1}")
    for k in range(4):
        a(f"v_mov_b32 v{36+k}, 0")
    a("v_cmp_gt_u32 vcc, 2, v9")
    a("s_and_saveexec_b64 s[30:31], vcc")
    for p in range(8):
        r = 16 + 4 * p if p < 5 else 36
        a(f"v_add_u32 v13, {(p>>2)*1024 + (p&3)*256}, v14")
        a(f"buffer_store_dwordx4 v[{r}:{r+3}], v13, s[16:19], 0 offen")
    a("s_andn2_b64 exec, s[30:31], exec")
    for k in range(5):
        a(f"ds_write_b128 v12, v[{16+4*k}:{19+4*k}] offset:{16*k}")
    a("s_mov_b64 exec, s[30:31]")
    a.label(f"{name}_x3")
    a("s_waitcnt lgkmcnt(0)")
    a("s_barrier")
    a.stamp()
    a("s_cmp_ge_u32 s26, 4")
    a(f"s_cbranch_scc1 {name}_x4")
    a("s_and_b32 s33, s26, 1")
    a("s_lshr_b32 s34, s26, 1")
    a("v_lshl_add_u32 v8, v3, 3, v4")
    a(f"v_mul_u32_u24 v9, {TS}, v8")
    a("v_lshl_add_u32 v9, v5, 3, v9")
    a("s_mul_i32 s35, s33, 40")
    a("s_lshl_b32 s38, s34, 5")
    a("s_add_u32 s35, s35, s38")
    a("v_add_u32 v9, s35, v9")
    a(f"v_mul_u32_u24 v10, {KS}, v8")
    a("v_lshl_add_u32 v10, v5, 3, v10")
    a("s_mul_i32 s35, s33, 80")
    a(f"s_add_u32 s35, s35, {PK0}")
    a("v_add_u32 v10, s35, v10")
    a("v_cmp_le_u32 s[38:39], 4, v2")
    a("s_cmp_eq_u32 s34, 1")
    a("s_cselect_b64 s[38:39], s[38:39], 0")
    a("v_mov_b32 v11, 0x3f803f80")
    for ks in range(4):
        for jh in range(2):
            a(f"ds_read_b64_tr_b16 v[{16+16*ks+2*jh}:{17+16*ks+2*jh}], v9 offset:{T0 + 160 + (32*ks + 4*jh)*TS}")
        for nt in range(3):
            for jh in range(2):
                a(f"ds_read_b64_tr_b16 v[{20+16*ks+4*nt+2*jh}:{21+16*ks+4*nt+2*jh}], v10 offset:{(32*ks+4*jh)*KS + nt*32}")
    a("s_waitcnt lgkmcnt(0)")
    for ks in range(4):
        for i in range(4):
            a(f"v_cndmask_b32 v{16+16*ks+i}, v{16+16*ks+i}, v11, s[38:39]")
    a("s_nop 1")
    for ks in range(4):
        for nt in range(3):
            srcc = "0" if ks == 0 else f"v[{96+4*nt}:{99+4*nt}]"
            a(f"v_mfma_f32_16x16x32_bf16 v[{96+4*nt}:{99+4*nt}], v[{16+16*ks}:{19+16*ks}], v[{20+16*ks+4*nt}:{23+16*ks+4*nt}], {srcc}")
    a("s_nop 15")
    a("s_lshl_b32 s35, s41, 5")
    a("s_lshl_b32 s38, s36, 1")
    a("s_add_u32 s35, s35, s38")
    a("s_add_u32 s35, s35, s33")
    a("s_lshl_b32 s35, s35, 5")
    a("s_lshl_b32 s38, s34, 4")
    a("s_add_u32 s35, s35, s38")
    a("v_lshlrev_b32 v12, 2, v3")
    a("v_add_u32 v12, s35, v12")
    a("v_lshlrev_b32 v12, 8, v12")
    a("v_lshl_add_u32 v12, v2, 2, v12")
    for nt in range(3):
        for i in range(4):
            a(f"buffer_store_dword v{96+4*nt+i}, v12, s[44:47], 0 offen offset:{i*256 + nt*64} sc0 sc1")
    a.label(f"{name}_x4")
    a("s_waitcnt vmcnt(0)")
    a("s_barrier")
    a.stamp()
    a("s_cmp_lg_u32 s26, 0")
    a(f"s_cbranch_scc1 {name}_x5")
    srd(a, 48, ('in', 'dbg'), 256)
    a("s_lshl_b32 s29, s36, 2")
    a("v_mov_b32 v2, 1")
    a("v_mov_b32 v3, 0")
    a("v_cmp_eq_u32 vcc, 0, v1")
    a("s_and_saveexec_b64 s[30:31], vcc")
    a("buffer_atomic_add v2, v3, s[48:51], s29 offen sc0 sc1")
    a("s_waitcnt vmcnt(0)")
    a(f"v_mov_b32 v3, {FLAG}")
    a("ds_write_b32 v3, v2")
    a("s_waitcnt lgkmcnt(0)")
    a("s_mov_b64 exec, s[30:31]")
    a.label(f"{name}_x5")
    a("s_barrier")
    a.stamp()
    a(f"v_mov_b32 v3, {FLAG}")
    a("ds_read_b32 v2, v3")
    a("s_waitcnt lgkmcnt(0)")
    a("v_readfirstlane_b32 s29, v2")
    a("s_nop 3")
    a("s_cmp_lg_u32 s29, 15")
    a(f"s_cbranch_scc1 {name}_end")
    a("buffer_inv sc1")
    a("s_waitcnt vmcnt(0)")
    a.stamp()
    srd(a, 48, ('ws', WS_KVF), 32 * 6144)
    a("s_cmp_ge_u32 s26, 6")
    a(f"s_cbranch_scc1 {name}_end")
    a("s_lshr_b32 s33, s26, 1")
    a("s_and_b32 s34, s26, 1")
    a("s_cmp_ge_u32 s26, 4")
    a("s_cselect_b32 s33, 0, s33")
    a("v_and_b32 v2, 15, v1")
    a("v_lshrrev_b32 v3, 4, v1")
    a("s_lshl_b32 s35, s33, 4")
    a("v_add_u32 v4, s35, v2")
    a("v_mov_b32 v5, 20")
    a("s_cmp_ge_u32 s26, 4")
    a("s_cselect_b64 s[38:39], -1, 0")
    a("v_cndmask_b32 v4, v4, v5, s[38:39]")
    a("s_lshl_b32 s35, s34, 5")
    a("v_lshl_add_u32 v6, v3, 3, s35")
    a("v_lshlrev_b32 v7, 8, v4")
    a("v_lshl_add_u32 v7, v6, 2, v7")
    for hh in range(2):
        a("s_lshl_b32 s35, s36, 1")
        a(f"s_add_u32 s35, s35, {hh}")
        for p in range(16):
            a(f"s_add_u32 s40, s35, {p*32}")
            a("s_lshl_b32 s40, s40, 13")
            a(f"buffer_load_dwordx4 v[{16+8*p}:{19+8*p}], v7, s[44:47], s40 offen sc0 sc1")
            a(f"buffer_load_dwordx4 v[{20+8*p}:{23+8*p}], v7, s[44:47], s40 offen offset:16 sc0 sc1")
        a("s_waitcnt vmcnt(0)")
        for p in range(1, 16):
            for j in range(8):
                a(f"v_add_f32 v{16+j}, v{16+j}, v{16+8*p+j}")
        for j in range(8):
            a(f"v_add_u32 v8, {j}, v6")
            a("v_cmp_gt_u32 vcc, 40, v8")
            a("s_mov_b64 s[42:43], vcc")
            a("v_cmp_gt_u32 vcc, 21, v4")
            a("s_and_b64 vcc, vcc, s[42:43]")
            a(f"v_cndmask_b32 v{16+j}, 0, v{16+j}, vcc")
        for j in range(4):
            a(f"v_cvt_pk_bf16_f32 v{16+j}, v{16+2*j}, v{17+2*j}")
        a("s_mul_i32 s40, s35, 6144")
        a("s_lshl_b32 s42, s26, 10")
        a("s_add_u32 s40, s40, s42")
        a("v_lshlrev_b32 v8, 4, v1")
        a("buffer_store_dwordx4 v[16:19], v8, s[48:51], s40 offen")
        a("s_waitcnt vmcnt(0)")
    a.label(f"{name}_end")
    a("s_endpgm")
    kernels.append((name, (256,1,1), (640,1,1), stats_off + 1024, 160, 0, a.text()))

def gen_k2(name):
    a = Asm()
    OS = 1280 + 16
    OT = 64 * OS
    c = Cfg(64, 80, 4, 1, 640, 1280, 1280, 6, lds_base=OT, a_res=(0, OS))
    a("s_cmp_ge_u32 s2, 256")
    a(f"s_cbranch_scc1 {name}_end")
    load_ptrs(a)
    wave_id(a)
    a("s_waitcnt lgkmcnt(0)")
    a.stamp_init(); a.stamp()
    srd(a, 12, ('in', 'wo'), 640 * 1280)
    srd(a, 16, ('ws', WS_H), ACT_BYTES)
    srd(a, 20, ('in', 'x'), ACT_BYTES)
    srd(a, 8, ('ws', WS_PHIQ), 128 * 32 * 2048)
    srd(a, 44, ('ws', WS_KVF), 32 * 6144)
    xmap(a, 32, 8, 4, 8)
    a("s_mul_i32 s24, s24, 64")
    a("s_mul_i32 s25, s25, 80")
    a("s_cmp_lt_u32 s26, 4")
    a(f"s_cbranch_scc1 {name}_noissue")
    a("s_sub_u32 s40, s26, 4")
    issue, D = dma_loader_role(a, c, 40, 4, False, True)
    for kc in range(c.S - 1):
        issue(kc)
    a.label(f"{name}_noissue")
    a.stamp()
    a("v_and_b32 v120, 15, v1")
    a("v_lshrrev_b32 v121, 4, v1")
    a("v_lshlrev_b32 v122, 8, v120")
    a("v_lshl_add_u32 v122, v121, 5, v122")
    a("v_add_u32 v123, 4096, v122")
    a("v_lshlrev_b32 v124, 5, v121")
    a("v_add_u32 v124, 5120, v124")
    a("v_add_u32 v125, s24, v120")
    a("v_mul_u32_u24 v125, 2560, v125")
    a("v_lshl_add_u32 v125, v121, 4, v125")
    for rt in range(1, 4):
        a(f"v_add_u32 v{125+rt}, {rt*16*2560}, v125")
    a(f"v_mul_u32_u24 v129, {OS}, v120")
    a("v_lshl_add_u32 v129, v121, 3, v129")
    a("v_cmp_gt_u32 s[34:35], 16, v1")
    KVB = 16
    a("v_lshlrev_b32 v122, 4, v1")
    a("s_lshr_b32 s41, s24, 4")
    def loads(hi):
        a("s_lshl_b32 s36, s26, 2")
        a(f"s_add_u32 s36, s36, {hi}")
        a("s_mul_i32 s37, s36, 6144")
        O = KVB + (hi % 2) * 48
        for fr in range(6):
            a(f"buffer_load_dwordx4 v[{O+fr*8}:{O+fr*8+3}], v122, s[44:47], s37 offen offset:{(fr%4)*1024}" if fr < 4 else "")
            if fr >= 4:
                a(f"v_add_u32 v123, {fr*1024}, v122")
                a(f"buffer_load_dwordx4 v[{O+fr*8}:{O+fr*8+3}], v123, s[44:47], s37 offen")
        for rt in range(4):
            a(f"s_add_u32 s38, s41, {rt}")
            a("s_lshl_b32 s38, s38, 5")
            a("s_add_u32 s38, s38, s36")
            a("s_lshl_b32 s38, s38, 11")
            for ks in range(2):
                r = (hi % 2) * 32 + (rt * 2 + ks) * 4
                a(f"buffer_load_dwordx4 a[{r}:{r+3}], v122, s[8:11], s38 offen offset:{ks*1024}")
    loads(0); loads(1)
    Cn = 132
    for hi in range(4):
        a(f"s_waitcnt vmcnt({14 if hi < 3 else 0})")
        a.stamp()
        O = KVB + (hi % 2) * 48
        a("s_lshl_b32 s36, s26, 2")
        a(f"s_add_u32 s36, s36, {hi}")
        a("s_mul_i32 s39, s36, 40")
        a("s_nop 0")
        for rt in range(4):
            dn = Cn + 8
            for mt in range(2):
                for ks in range(2):
                    b = (hi % 2) * 32 + (rt * 2 + ks) * 4
                    cc = Cn + mt * 4
                    srcc = "0" if ks == 0 else f"v[{cc}:{cc+3}]"
                    a(f"v_mfma_f32_16x16x32_bf16 v[{cc}:{cc+3}], v[{O+(mt*2+ks)*8}:{O+(mt*2+ks)*8+3}], a[{b}:{b+3}], {srcc}")
            for ks in range(2):
                b = (hi % 2) * 32 + (rt * 2 + ks) * 4
                srcc = "0" if ks == 0 else f"v[{dn}:{dn+3}]"
                a(f"v_mfma_f32_16x16x32_bf16 v[{dn}:{dn+3}], v[{O+32+ks*8}:{O+32+ks*8+3}], a[{b}:{b+3}], {srcc}")
            a("s_nop 7")
            bf16_round(a, dn + 4, dn)
            a(f"v_add_f32 v{dn+4}, 0x358637bd, v{dn+4}")
            bf16_round(a, dn + 4, dn + 4)
            a(f"v_rcp_f32 v{dn+5}, v{dn+4}")
            a(f"v_add_u32 v130, {rt*16*OS}, v129")
            a("v_add_u32 v130, s39, v130")
            for mt in range(2):
                cc = Cn + mt * 4
                for i in range(4):
                    bf16_round(a, cc + i, cc + i)
                for i in range(4):
                    a(f"v_mul_f32 v{dn+6+i}, v{cc+i}, v{dn+5}")
                for i in range(4):
                    a(f"v_fma_f32 v{cc+i}, -v{dn+6+i}, v{dn+4}, v{cc+i}")
                for i in range(4):
                    a(f"v_fma_f32 v{cc+i}, v{cc+i}, v{dn+5}, v{dn+6+i}")
                a(f"v_cvt_pk_bf16_f32 v{cc}, v{cc}, v{cc+1}")
                a(f"v_cvt_pk_bf16_f32 v{cc+1}, v{cc+2}, v{cc+3}")
                if mt == 1:
                    a("s_and_saveexec_b64 s[30:31], s[34:35]")
                a(f"ds_write_b64 v130, v[{cc}:{cc+1}] offset:{mt*32}")
                if mt == 1:
                    a("s_mov_b64 exec, s[30:31]")
        if hi + 2 < 4:
            a("s_nop 7")
            loads(hi + 2)
    a("s_waitcnt lgkmcnt(0)")
    a.nst = 8; a.stamp()
    a("s_cmp_ge_u32 s26, 4")
    a(f"s_cbranch_scc1 {name}_idle")
    ACC, vend = compute_role(a, c)
    a(f"s_branch {name}_epi")
    a.label(f"{name}_idle")
    dma_loader_loop(a, c, issue, D, pre_issued=True)
    a.label(f"{name}_epi")
    a.nst = 20; a.stamp()
    CS = 176
    a("s_barrier")
    a("s_cmp_ge_u32 s26, 4")
    a(f"s_cbranch_scc1 {name}_e2")
    acc_to_lds(a, c, ACC, CS, 0, 'store')
    a.label(f"{name}_e2")
    a("s_barrier")
    nv = store_tile(a, c, CS, 0, 1280, 640, 512, True)
    a("s_waitcnt vmcnt(0)")
    a.stamp()
    a.label(f"{name}_end")
    a("s_endpgm")
    kernels.append((name, (256,1,1), (512,1,1), c.lds_end, 160, 64, a.text()))

if __name__ == "__main__":
    if len(sys.argv) > 2 and sys.argv[2] == 'st':
        Asm.STAMP = True
    gen_k1("k1n_kernel")
    gen_k2("k2n_kernel")
    gen_k4("k4_kernel")
    gen_k5("k5_kernel")
    emit(sys.argv[1])
```

```python
import sys
from g5core import *
LOG2E = 0x3fb8aa3b

def wave_id(a):
    a("v_and_b32 v1, 63, v0")
    a("v_lshrrev_b32 v2, 6, v0")
    a("s_nop 0")
    a("v_readfirstlane_b32 s26, v2")
    a("s_nop 1")

def xmap(a, ntm, ntn, bm, bn):
    nbn = ntn // bn
    a("s_and_b32 s29, s2, 7")
    a("s_lshr_b32 s30, s2, 3")
    md, sd = magic_div(nbn, 8)
    a(f"s_mul_i32 s31, s29, {md}")
    a(f"s_lshr_b32 s31, s31, {sd}")
    a(f"s_mul_i32 s32, s31, {nbn}")
    a("s_sub_u32 s32, s29, s32")
    md, sd = magic_div(bn, 64)
    a(f"s_mul_i32 s33, s30, {md}")
    a(f"s_lshr_b32 s33, s33, {sd}")
    a(f"s_mul_i32 s34, s33, {bn}")
    a("s_sub_u32 s34, s30, s34")
    a(f"s_mul_i32 s24, s31, {bm}")
    a("s_add_u32 s24, s24, s33")
    a(f"s_mul_i32 s25, s32, {bn}")
    a("s_add_u32 s25, s25, s34")

def acc_to_lds(a, c, ACC, CS, base, epi, T=8):
    a(f"v_and_b32 v{T}, 15, v1")
    a(f"v_lshrrev_b32 v{T+1}, 4, v1")
    a(f"v_add_u32 v{T}, s27, v{T}")
    a(f"v_mul_u32_u24 v{T}, {CS}, v{T}")
    a(f"v_lshlrev_b32 v{T+1}, 3, v{T+1}")
    a("s_lshl_b32 s29, s28, 1")
    a(f"v_add3_u32 v{T}, v{T}, v{T+1}, s29")
    for mt in range(c.TM):
        for nt in range(c.TN):
            cc = ACC + (mt * c.TN + nt) * 4
            if epi == 'silu':
                for i in range(4):
                    bf16_round(a, cc + i, cc + i)
                    a(f"v_mul_f32 v{T+1+i}, 0xbfb8aa3b, v{cc+i}")
                for i in range(4):
                    a(f"v_exp_f32 v{T+1+i}, v{T+1+i}")
                a("s_nop 0")
                for i in range(4):
                    a(f"v_add_f32 v{T+1+i}, 1.0, v{T+1+i}")
                for i in range(4):
                    a(f"v_rcp_f32 v{T+1+i}, v{T+1+i}")
                a("s_nop 0")
                for i in range(4):
                    a(f"v_mul_f32 v{cc+i}, v{cc+i}, v{T+1+i}")
            a(f"v_cvt_pk_bf16_f32 v{cc}, v{cc}, v{cc+1}")
            a(f"v_cvt_pk_bf16_f32 v{cc+1}, v{cc+2}, v{cc+3}")
            a(f"ds_write_b64 v{T}, v[{cc}:{cc+1}] offset:{base + mt*16*CS + nt*32}")
    a("s_waitcnt lgkmcnt(0)")

def store_tile(a, c, CS, base, ldc, N, nthreads, residual, T=8, R=16):
    cpr = c.NT // 8
    nch = c.MT * cpr
    npass = (nch + nthreads - 1) // nthreads
    md, sd = magic_div(cpr, nch + nthreads)
    a(f"s_mul_i32 s29, s24, {ldc}")
    a("s_lshl_b32 s30, s25, 1")
    a("s_add_u32 s29, s29, s30")
    for i in range(npass):
        r = R + i * 12
        a(f"v_add_u32 v{T}, {nthreads*i}, v0")
        a(f"v_mul_u32_u24 v{T+1}, {md}, v{T}")
        a(f"v_lshrrev_b32 v{T+1}, {sd}, v{T+1}")
        a(f"v_mul_u32_u24 v{T+2}, {cpr}, v{T+1}")
        a(f"v_sub_u32 v{T+2}, v{T}, v{T+2}")
        a(f"v_mul_u32_u24 v{T+3}, {CS}, v{T+1}")
        a(f"v_lshl_add_u32 v{T+3}, v{T+2}, 4, v{T+3}")
        a(f"ds_read_b128 v[{r}:{r+3}], v{T+3} offset:{base}")
        a(f"v_mul_u32_u24 v{T+3}, {ldc}, v{T+1}")
        a(f"v_lshl_add_u32 v{r+8}, v{T+2}, 4, v{T+3}")
        a(f"v_lshlrev_b32 v{T+4}, 3, v{T+2}")
        a(f"v_add_u32 v{T+4}, s25, v{T+4}")
        a(f"v_cmp_gt_u32 vcc, {nch}, v{T}")
        a("s_mov_b64 s[34:35], vcc")
        a(f"v_cmp_gt_u32 vcc, {N}, v{T+4}")
        a("s_and_b64 s[34:35], s[34:35], vcc")
        a(f"v_cndmask_b32 v{r+8}, -1, v{r+8}, s[34:35]")
        if residual:
            a(f"buffer_load_dwordx4 v[{r+4}:{r+7}], v{r+8}, s[20:23], s29 offen")
    a("s_waitcnt vmcnt(0) lgkmcnt(0)")
    for i in range(npass):
        r = R + i * 12
        if residual:
            for j in range(4):
                a(f"v_lshlrev_b32 v{T}, 16, v{r+j}")
                a(f"v_and_b32 v{T+1}, 0xffff0000, v{r+j}")
                a(f"v_lshlrev_b32 v{T+2}, 16, v{r+4+j}")
                a(f"v_and_b32 v{T+3}, 0xffff0000, v{r+4+j}")
                a(f"v_add_f32 v{T}, v{T}, v{T+2}")
                a(f"v_add_f32 v{T+1}, v{T+1}, v{T+3}")
                a(f"v_cvt_pk_bf16_f32 v{r+j}, v{T}, v{T+1}")
        a(f"buffer_store_dwordx4 v[{r}:{r+3}], v{r+8}, s[16:19], s29 offen")
    return R + npass * 12

def ln_gemm_body(a, name, c, srdX, stats_off, gather_hp):
    a("s_cmp_ge_u32 s26, 8")
    a(f"s_cbranch_scc1 {name}_bl")
    stats_role(a, srdX, c.lda, stats_off, 26)
    a.stamp()
    a("s_barrier")
    a("s_cmp_ge_u32 s26, 4")
    a(f"s_cbranch_scc1 {name}_nm")
    ACC, vend = compute_role(a, c)
    a(f"s_branch {name}_epi")
    a.label(f"{name}_nm")
    norm_role(a, c, srdX, stats_off)
    a(f"s_branch {name}_epi")
    a.label(f"{name}_bl")
    a("s_sub_u32 s37, s26, 8")
    issue, D = dma_loader_role(a, c, 37, 2, False, True, gather_hp)
    for kc in range(c.S - 1):
        issue(kc)
    a("s_barrier")
    dma_loader_loop(a, c, issue, D, pre_issued=True)
    a.label(f"{name}_epi")
    a.nst = 20; a.stamp()
    return ACC, vend

def gen_k4(name):
    a = Asm()
    c = Cfg(128, 128, 2, 2, 640, 1280, 3456, 4)
    stats_off = c.lds_end
    a("s_cmp_ge_u32 s2, 224")
    a(f"s_cbranch_scc1 {name}_end")
    load_ptrs(a)
    wave_id(a)
    a("s_waitcnt lgkmcnt(0)")
    a.stamp_init(); a.stamp()
    srd(a, 8, ('ws', WS_H), ACT_BYTES)
    srd(a, 12, ('in', 'w1'), 640 * 3456)
    srd(a, 16, ('ws', WS_S), 2048 * 3456)
    xmap(a, 16, 14, 2, 14)
    a("s_mul_i32 s24, s24, 128")
    a("s_mul_i32 s25, s25, 128")
    ACC, vend = ln_gemm_body(a, name, c, 8, stats_off, None)
    CS = 272
    a("s_barrier")
    a("s_cmp_ge_u32 s26, 4")
    a(f"s_cbranch_scc1 {name}_e2")
    acc_to_lds(a, c, ACC, CS, 0, 'silu')
    a.label(f"{name}_e2")
    a("s_barrier")
    nv = store_tile(a, c, CS, 0, 3456, 1728, 640, False)
    a("s_waitcnt vmcnt(0)")
    a.stamp()
    a.label(f"{name}_end")
    a("s_endpgm")
    kernels.append((name, (224,1,1), (640,1,1), stats_off + 1024, max(vend, nv, 100), 0, a.text()))

def gen_k5(name):
    a = Asm()
    c = Cfg(64, 80, 4, 1, 1728, 3456, 1280, 6)
    a("s_cmp_ge_u32 s2, 256")
    a(f"s_cbranch_scc1 {name}_end")
    load_ptrs(a)
    wave_id(a)
    a("s_waitcnt lgkmcnt(0)")
    a.stamp_init(); a.stamp()
    srd(a, 8, ('ws', WS_S), 2048 * 3456)
    srd(a, 12, ('in', 'w2'), 1728 * 1280)
    srd(a, 16, ('in', 'out'), ACT_BYTES)
    srd(a, 20, ('ws', WS_H), ACT_BYTES)
    xmap(a, 32, 8, 4, 8)
    a("s_mul_i32 s24, s24, 64")
    a("s_mul_i32 s25, s25, 80")
    a("s_cmp_ge_u32 s26, 4")
    a(f"s_cbranch_scc1 {name}_ld")
    ACC, vend = compute_role(a, c)
    a(f"s_branch {name}_epi")
    a.label(f"{name}_ld")
    a("s_sub_u32 s37, s26, 4")
    issue, D = dma_loader_role(a, c, 37, 4, True, True)
    dma_loader_loop(a, c, issue, D)
    a.label(f"{name}_epi")
    a.nst = 20; a.stamp()
    CS = 176
    a("s_barrier")
    a("s_cmp_ge_u32 s26, 4")
    a(f"s_cbranch_scc1 {name}_e2")
    acc_to_lds(a, c, ACC, CS, 0, 'store')
    a.label(f"{name}_e2")
    a("s_barrier")
    nv = store_tile(a, c, CS, 0, 1280, 640, 512, True)
    a("s_waitcnt vmcnt(0)")
    a.stamp()
    a.label(f"{name}_end")
    a("s_endpgm")
    kernels.append((name, (256,1,1), (512,1,1), c.lds_end, max(vend, nv), 0, a.text()))


WS_KVF = 0x1000000
def gen_k1(name):
    a = Asm()
    c = Cfg(128, 128, 2, 2, 640, 1280, 3840, 4)
    stats_off = c.lds_end
    TS = 272; PS = 176; KS = 160
    WP0 = 0; T0 = 4096
    PQ0 = T0 + 128 * TS + 64
    PK0 = PQ0 + 128 * PS + 64
    FLAG = PK0 + 128 * KS + 256
    a("s_cmp_ge_u32 s2, 256")
    a(f"s_cbranch_scc1 {name}_end")
    load_ptrs(a)
    wave_id(a)
    a("s_waitcnt lgkmcnt(0)")
    a.stamp_init(); a.stamp()
    srd(a, 8, ('in', 'x'), ACT_BYTES)
    srd(a, 12, ('in', 'wqkv'), 640 * 3840)
    srd(a, 16, ('ws', WS_PHIQ), 128 * 32 * 2048)
    srd(a, 20, ('in', 'wphi'), 32 * 800)
    srd(a, 44, ('ws', WS_KVF), 32 * 12288)
    a("s_and_b32 s29, s2, 7")
    a("s_lshr_b32 s30, s2, 3")
    a("s_lshl_b32 s24, s29, 1")
    a("s_lshr_b32 s31, s30, 4")
    a("s_add_u32 s24, s24, s31")
    a("s_mov_b32 s41, s24")
    a("s_and_b32 s36, s30, 15")
    a("s_mov_b32 s25, 0")
    a("s_mul_i32 s24, s24, 128")
    ACC, vend = ln_gemm_body(a, name, c, 8, stats_off, 36)
    a("s_mul_i32 s37, s36, 1600")
    a("v_lshlrev_b32 v3, 1, v0")
    a("buffer_load_ushort v150, v3, s[20:23], s37 offen")
    a("buffer_load_ushort v151, v3, s[20:23], s37 offen offset:800")
    a("s_barrier")
    a.stamp()
    a("v_lshlrev_b32 v2, 3, v0")
    a("v_mov_b32 v4, 0")
    a("v_mov_b32 v5, 0")
    a("v_cmp_gt_u32 vcc, 512, v0")
    a("s_and_saveexec_b64 s[30:31], vcc")
    a(f"ds_write_b64 v2, v[4:5] offset:{WP0}")
    a("s_mov_b64 exec, s[30:31]")
    a("s_cmp_ge_u32 s26, 4")
    a(f"s_cbranch_scc1 {name}_x1")
    acc_to_lds(a, c, ACC, TS, T0, 'store')
    a.label(f"{name}_x1")
    a("s_waitcnt lgkmcnt(0)")
    a("s_barrier")
    a.stamp()
    m20, s20 = magic_div(20, 700)
    a("s_waitcnt vmcnt(0)")
    a(f"v_mul_u32_u24 v3, {m20}, v0")
    a(f"v_lshrrev_b32 v3, {s20}, v3")
    a("v_mul_u32_u24 v4, 20, v3")
    a("v_sub_u32 v4, v0, v4")
    a("v_lshlrev_b32 v3, 6, v3")
    a("v_lshl_add_u32 v3, v4, 1, v3")
    a("v_cmp_gt_u32 vcc, 400, v0")
    a("s_and_saveexec_b64 s[30:31], vcc")
    a(f"ds_write_b16 v3, v150 offset:{WP0}")
    a(f"ds_write_b16 v3, v151 offset:{WP0 + 2048}")
    a("s_mov_b64 exec, s[30:31]")
    a("s_waitcnt lgkmcnt(0)")
    a("s_barrier")
    a.stamp()
    a("v_and_b32 v2, 15, v1")
    a("v_lshrrev_b32 v3, 4, v1")
    a("v_lshrrev_b32 v4, 2, v2")
    a("v_and_b32 v5, 3, v1")
    a("s_cmp_ge_u32 s26, 8")
    a(f"s_cbranch_scc1 {name}_x2")
    a("v_lshl_add_u32 v7, v3, 3, v4")
    a("v_lshlrev_b32 v7, 6, v7")
    a("v_lshl_add_u32 v7, v5, 3, v7")
    for hh in range(2):
        for mt in range(2):
            for jh in range(2):
                r = 64 + (hh * 2 + mt) * 4 + jh * 2
                a(f"ds_read_b64_tr_b16 v[{r}:{r+1}], v7 offset:{WP0 + hh*2048 + jh*256 + mt*32}")
    a("s_lshl_b32 s33, s26, 4")
    a("v_add_u32 v8, s33, v2")
    a(f"v_mul_u32_u24 v9, {TS}, v8")
    a("v_lshl_add_u32 v9, v3, 4, v9")
    a(f"v_mul_u32_u24 v10, {PS}, v8")
    a("v_lshl_add_u32 v10, v3, 3, v10")
    a("v_cmp_gt_u32 s[34:35], 16, v1")
    for sh in range(4):
        off = T0 + sh * 40
        a(f"ds_read_b64 v[{80+4*sh}:{81+4*sh}], v9 offset:{off}")
        a(f"ds_read_b64 v[{82+4*sh}:{83+4*sh}], v9 offset:{off+8}")
    a("s_waitcnt lgkmcnt(0)")
    for sh in range(4):
        hh = sh & 1
        for mt in range(2):
            wa = 64 + (hh * 2 + mt) * 4
            a(f"v_mfma_f32_16x16x32_bf16 v[{96+8*sh+4*mt}:{99+8*sh+4*mt}], v[{wa}:{wa+3}], v[{80+4*sh}:{83+4*sh}], 0")
    a("s_nop 7")
    for sh in range(4):
        for mt in range(2):
            cc = 96 + 8 * sh + 4 * mt
            a(f"v_cvt_pk_bf16_f32 v{cc}, v{cc}, v{cc+1}")
            a(f"v_cvt_pk_bf16_f32 v{cc+1}, v{cc+2}, v{cc+3}")
            if mt == 1:
                a("s_and_saveexec_b64 s[30:31], s[34:35]")
            a(f"ds_write_b64 v10, v[{cc}:{cc+1}] offset:{PQ0 + (sh*20 + 16*mt)*2}")
            if mt == 1:
                a("s_mov_b64 exec, s[30:31]")
    a.label(f"{name}_x2")
    a("s_waitcnt lgkmcnt(0)")
    a("s_barrier")
    a.stamp()
    a("s_cmp_ge_u32 s26, 8")
    a(f"s_cbranch_scc1 {name}_x3")
    a("v_lshrrev_b32 v8, 2, v0")
    a("v_and_b32 v9, 3, v0")
    a(f"v_mul_u32_u24 v10, {PS}, v8")
    a("v_mul_u32_u24 v11, 40, v9")
    a("v_add_u32 v10, v10, v11")
    for k in range(5):
        a(f"ds_read_b64 v[{16+2*k}:{17+2*k}], v10 offset:{PQ0 + 8*k}")
    a("v_and_b32 v13, 1, v9")
    a(f"v_mul_u32_u24 v12, {KS}, v8")
    a("v_mul_u32_u24 v14, 80, v13")
    a("v_add_u32 v12, v12, v14")
    a(f"v_add_u32 v12, {PK0}, v12")
    a("v_add_u32 v14, s24, v8")
    a("v_lshrrev_b32 v15, 4, v14")
    a("v_lshlrev_b32 v15, 5, v15")
    a("s_lshl_b32 s28, s36, 1")
    a("v_add3_u32 v15, v15, v13, s28")
    a("v_lshlrev_b32 v15, 11, v15")
    a("v_and_b32 v14, 15, v14")
    a("v_lshl_add_u32 v14, v14, 4, v15")
    a("s_waitcnt lgkmcnt(0)")
    for k in range(10):
        a(f"v_and_b32 v{33+2*k}, 0xffff0000, v{16+k}")
        a(f"v_lshlrev_b32 v{32+2*k}, 16, v{16+k}")
    a("v_max_f32 v28, v32, v33")
    a("v_min_f32 v29, v32, v33")
    a("v_max_f32 v30, v34, v35")
    a("v_min_f32 v31, v34, v35")
    for k in range(4, 20, 2):
        a(f"v_max_f32 v28, v28, v{32+k}")
        a(f"v_min_f32 v29, v29, v{32+k}")
        a(f"v_max_f32 v30, v30, v{33+k}")
        a(f"v_min_f32 v31, v31, v{33+k}")
    a("v_max_f32 v28, v28, v30")
    a("v_min_f32 v29, v29, v31")
    a(f"s_mov_b32 s38, {LOG2E}")
    for k in range(20):
        a(f"v_sub_f32 v{52+k}, v{32+k}, v28")
        a(f"v_sub_f32 v{72+k}, v29, v{32+k}")
    for k in range(20):
        a(f"v_mul_f32 v{52+k}, s38, v{52+k}")
        a(f"v_mul_f32 v{72+k}, s38, v{72+k}")
    for k in range(20):
        a(f"v_exp_f32 v{52+k}, v{52+k}")
        a(f"v_exp_f32 v{72+k}, v{72+k}")
    a("s_nop 0")
    a("v_add_f32 v28, v52, v53")
    a("v_add_f32 v29, v72, v73")
    a("v_add_f32 v30, v54, v55")
    a("v_add_f32 v31, v74, v75")
    for k in range(4, 20, 2):
        a(f"v_add_f32 v28, v28, v{52+k}")
        a(f"v_add_f32 v29, v29, v{72+k}")
        a(f"v_add_f32 v30, v30, v{53+k}")
        a(f"v_add_f32 v31, v31, v{73+k}")
    a("v_add_f32 v28, v28, v30")
    a("v_add_f32 v29, v29, v31")
    a("v_rcp_f32 v30, v28")
    a("v_rcp_f32 v31, v29")
    a("s_nop 0")
    for k in range(20):
        a(f"v_mul_f32 v{92+k}, v{52+k}, v30")
        a(f"v_mul_f32 v{112+k}, v{72+k}, v31")
    for k in range(20):
        a(f"v_fma_f32 v{52+k}, -v{92+k}, v28, v{52+k}")
        a(f"v_fma_f32 v{72+k}, -v{112+k}, v29, v{72+k}")
    for k in range(20):
        a(f"v_fma_f32 v{52+k}, v{52+k}, v30, v{92+k}")
        a(f"v_fma_f32 v{72+k}, v{72+k}, v31, v{112+k}")
    for k in range(20):
        src = 52 + 2 * k if k < 10 else 72 + 2 * (k - 10)
        a(f"v_cvt_pk_bf16_f32 v{16+k}, v{src}, v{src+1}")
    for k in range(4):
        a(f"v_mov_b32 v{36+k}, 0")
    a("v_cmp_gt_u32 vcc, 2, v9")
    a("s_and_saveexec_b64 s[30:31], vcc")
    for p in range(8):
        r = 16 + 4 * p if p < 5 else 36
        a(f"v_add_u32 v13, {(p>>2)*1024 + (p&3)*256}, v14")
        a(f"buffer_store_dwordx4 v[{r}:{r+3}], v13, s[16:19], 0 offen")
    a("s_andn2_b64 exec, s[30:31], exec")
    for k in range(5):
        a(f"ds_write_b128 v12, v[{16+4*k}:{19+4*k}] offset:{16*k}")
    a("s_mov_b64 exec, s[30:31]")
    a.label(f"{name}_x3")
    a("s_waitcnt lgkmcnt(0)")
    a("s_barrier")
    a.stamp()
    a("s_cmp_ge_u32 s26, 4")
    a(f"s_cbranch_scc1 {name}_x4")
    a("s_and_b32 s33, s26, 1")
    a("s_lshr_b32 s34, s26, 1")
    a("v_lshl_add_u32 v8, v3, 3, v4")
    a(f"v_mul_u32_u24 v9, {TS}, v8")
    a("v_lshl_add_u32 v9, v5, 3, v9")
    a("s_mul_i32 s35, s33, 40")
    a("s_lshl_b32 s38, s34, 5")
    a("s_add_u32 s35, s35, s38")
    a("v_add_u32 v9, s35, v9")
    a(f"v_mul_u32_u24 v10, {KS}, v8")
    a("v_lshl_add_u32 v10, v5, 3, v10")
    a("s_mul_i32 s35, s33, 80")
    a(f"s_add_u32 s35, s35, {PK0}")
    a("v_add_u32 v10, s35, v10")
    a("v_cmp_le_u32 s[38:39], 4, v2")
    a("s_cmp_eq_u32 s34, 1")
    a("s_cselect_b64 s[38:39], s[38:39], 0")
    a("v_mov_b32 v11, 0x3f803f80")
    for ks in range(4):
        for jh in range(2):
            a(f"ds_read_b64_tr_b16 v[{16+16*ks+2*jh}:{17+16*ks+2*jh}], v9 offset:{T0 + 160 + (32*ks + 4*jh)*TS}")
        for nt in range(3):
            for jh in range(2):
                a(f"ds_read_b64_tr_b16 v[{20+16*ks+4*nt+2*jh}:{21+16*ks+4*nt+2*jh}], v10 offset:{(32*ks+4*jh)*KS + nt*32}")
    a("s_waitcnt lgkmcnt(0)")
    for ks in range(4):
        for i in range(4):
            a(f"v_cndmask_b32 v{16+16*ks+i}, v{16+16*ks+i}, v11, s[38:39]")
    a("s_nop 1")
    for ks in range(4):
        for nt in range(3):
            srcc = "0" if ks == 0 else f"v[{96+4*nt}:{99+4*nt}]"
            a(f"v_mfma_f32_16x16x32_bf16 v[{96+4*nt}:{99+4*nt}], v[{16+16*ks}:{19+16*ks}], v[{20+16*ks+4*nt}:{23+16*ks+4*nt}], {srcc}")
    a("s_nop 15")
    a("s_lshl_b32 s35, s36, 1")
    a("s_add_u32 s35, s35, s33")
    a("s_mul_i32 s35, s35, 12288")
    a("v_cmp_gt_u32 s[40:41], 8, v2")
    a("v_cmp_eq_u32 s[42:43], 0, v3")
    a("v_cmp_gt_u32 s[48:49], 2, v3")
    a("s_cmp_eq_u32 s34, 0")
    a("s_cselect_b64 s[42:43], -1, s[42:43]")
    a("s_cselect_b64 s[48:49], -1, s[48:49]")
    a("s_mov_b64 s[30:31], exec")
    for nt in range(3):
        for i in range(4):
            a(f"v_add_u32 v12, {16*nt}, v2")
            a("v_lshrrev_b32 v13, 5, v12")
            a("v_and_b32 v14, 31, v12")
            a("v_lshrrev_b32 v15, 3, v14")
            a("v_and_b32 v14, 7, v14")
            a("s_lshl_b32 s38, s34, 4")
            a(f"v_lshl_add_u32 v6, v3, 2, {i}")
            a("v_add_u32 v6, s38, v6")
            a("v_cmp_eq_u32 vcc, 20, v6")
            a("v_lshrrev_b32 v7, 4, v6")
            a("v_lshl_add_u32 v7, v7, 1, v13")
            a("v_add_u32 v8, 4, v13")
            a("v_cndmask_b32 v7, v7, v8, vcc")
            a("v_and_b32 v8, 15, v6")
            a("v_cndmask_b32 v8, v8, 0, vcc")
            a("v_lshl_add_u32 v8, v15, 4, v8")
            a("v_lshl_add_u32 v7, v7, 6, v8")
            a("v_lshlrev_b32 v7, 5, v7")
            a("v_lshl_add_u32 v7, v14, 2, v7")
            src = "s[48:49]" if i == 0 else "s[42:43]"
            if nt == 2:
                a(f"s_and_b64 exec, {src}, s[40:41]")
            else:
                a(f"s_mov_b64 exec, {src}")
            a(f"buffer_atomic_add_f32 v{96+4*nt+i}, v7, s[44:47], s35 offen")
            a("s_mov_b64 exec, s[30:31]")
    a.label(f"{name}_x4")
    a.label(f"{name}_end")
    a("s_endpgm")
    kernels.append((name, (256,1,1), (640,1,1), stats_off + 1024, 160, 0, a.text()))

def gen_k2(name):
    a = Asm()
    OS = 1280 + 16
    OT = 64 * OS
    c = Cfg(64, 80, 4, 1, 640, 1280, 1280, 6, lds_base=OT, a_res=(0, OS))
    a("s_cmp_ge_u32 s2, 256")
    a(f"s_cbranch_scc1 {name}_end")
    load_ptrs(a)
    wave_id(a)
    a("s_waitcnt lgkmcnt(0)")
    a.stamp_init(); a.stamp()
    srd(a, 12, ('in', 'wo'), 640 * 1280)
    srd(a, 16, ('ws', WS_H), ACT_BYTES)
    srd(a, 20, ('in', 'x'), ACT_BYTES)
    srd(a, 8, ('ws', WS_PHIQ), 128 * 32 * 2048)
    srd(a, 44, ('ws', WS_KVF), 32 * 12288)
    xmap(a, 32, 8, 4, 8)
    a("s_mul_i32 s24, s24, 64")
    a("s_mul_i32 s25, s25, 80")
    for k in range(2, 6):
        a(f"v_mov_b32 v{k}, 0")
    a("s_cmp_lt_u32 s26, 4")
    a(f"s_cbranch_scc1 {name}_noissue")
    a("s_sub_u32 s40, s26, 4")
    issue, D = dma_loader_role(a, c, 40, 4, False, True)
    for kc in range(c.S - 1):
        issue(kc)
    a.label(f"{name}_noissue")
    a.stamp()
    a("v_and_b32 v120, 15, v1")
    a("v_lshrrev_b32 v121, 4, v1")
    a("v_lshlrev_b32 v122, 8, v120")
    a("v_lshl_add_u32 v122, v121, 5, v122")
    a("v_add_u32 v123, 4096, v122")
    a("v_lshlrev_b32 v124, 5, v121")
    a("v_add_u32 v124, 5120, v124")
    a("v_add_u32 v125, s24, v120")
    a("v_mul_u32_u24 v125, 2560, v125")
    a("v_lshl_add_u32 v125, v121, 4, v125")
    for rt in range(1, 4):
        a(f"v_add_u32 v{125+rt}, {rt*16*2560}, v125")
    a(f"v_mul_u32_u24 v129, {OS}, v120")
    a("v_lshl_add_u32 v129, v121, 3, v129")
    a("v_cmp_gt_u32 s[34:35], 16, v1")
    KVB = 16
    a("v_lshlrev_b32 v122, 4, v1")
    a("v_lshlrev_b32 v124, 5, v1")
    a("v_and_b32 v125, 48, v1")
    a("v_lshlrev_b32 v125, 5, v125")
    a("s_lshr_b32 s41, s24, 4")
    def loads(hi):
        a("s_lshl_b32 s36, s26, 2")
        a(f"s_add_u32 s36, s36, {hi}")
        a("s_mul_i32 s37, s36, 12288")
        O = KVB + (hi % 2) * 48
        for fr in range(6):
            vv = 124 if fr < 4 else 125
            a(f"v_add_u32 v123, {fr*2048}, v{vv}")
            a(f"buffer_load_dwordx4 v[{O+fr*8}:{O+fr*8+3}], v123, s[44:47], s37 offen")
            a(f"buffer_load_dwordx4 v[{O+fr*8+4}:{O+fr*8+7}], v123, s[44:47], s37 offen offset:16")
        for rt in range(4):
            a(f"s_add_u32 s38, s41, {rt}")
            a("s_lshl_b32 s38, s38, 5")
            a("s_add_u32 s38, s38, s36")
            a("s_lshl_b32 s38, s38, 11")
            for ks in range(2):
                r = (hi % 2) * 32 + (rt * 2 + ks) * 4
                a(f"buffer_load_dwordx4 a[{r}:{r+3}], v122, s[8:11], s38 offen offset:{ks*1024}")
    loads(0); loads(1)
    Cn = 132
    for hi in range(4):
        a(f"s_waitcnt vmcnt({20 if hi < 3 else 0})")
        for blk in range(6):
            for jj in range(4):
                a(f"v_cvt_pk_bf16_f32 v{KVB+(hi%2)*48+blk*8+jj}, v{KVB+(hi%2)*48+blk*8+2*jj}, v{KVB+(hi%2)*48+blk*8+2*jj+1}")
        a.stamp()
        O = KVB + (hi % 2) * 48
        a("s_lshl_b32 s36, s26, 2")
        a(f"s_add_u32 s36, s36, {hi}")
        a("s_mul_i32 s39, s36, 40")
        a("s_nop 0")
        for rt in range(4):
            dn = Cn + 8
            for mt in range(2):
                for ks in range(2):
                    b = (hi % 2) * 32 + (rt * 2 + ks) * 4
                    cc = Cn + mt * 4
                    srcc = "0" if ks == 0 else f"v[{cc}:{cc+3}]"
                    a(f"v_mfma_f32_16x16x32_bf16 v[{cc}:{cc+3}], v[{O+(mt*2+ks)*8}:{O+(mt*2+ks)*8+3}], a[{b}:{b+3}], {srcc}")
            for ks in range(2):
                b = (hi % 2) * 32 + (rt * 2 + ks) * 4
                srcc = "0" if ks == 0 else f"v[{dn}:{dn+3}]"
                a(f"v_mfma_f32_16x16x32_bf16 v[{dn}:{dn+3}], v[{O+32+ks*8}:{O+32+ks*8+3}], a[{b}:{b+3}], {srcc}")
            a("s_nop 7")
            bf16_round(a, dn + 4, dn)
            a(f"v_add_f32 v{dn+4}, 0x358637bd, v{dn+4}")
            bf16_round(a, dn + 4, dn + 4)
            a(f"v_rcp_f32 v{dn+5}, v{dn+4}")
            a(f"v_add_u32 v130, {rt*16*OS}, v129")
            a("v_add_u32 v130, s39, v130")
            for mt in range(2):
                cc = Cn + mt * 4
                for i in range(4):
                    bf16_round(a, cc + i, cc + i)
                for i in range(4):
                    a(f"v_mul_f32 v{dn+6+i}, v{cc+i}, v{dn+5}")
                for i in range(4):
                    a(f"v_fma_f32 v{cc+i}, -v{dn+6+i}, v{dn+4}, v{cc+i}")
                for i in range(4):
                    a(f"v_fma_f32 v{cc+i}, v{cc+i}, v{dn+5}, v{dn+6+i}")
                a(f"v_cvt_pk_bf16_f32 v{cc}, v{cc}, v{cc+1}")
                a(f"v_cvt_pk_bf16_f32 v{cc+1}, v{cc+2}, v{cc+3}")
                if mt == 1:
                    a("s_and_saveexec_b64 s[30:31], s[34:35]")
                a(f"ds_write_b64 v130, v[{cc}:{cc+1}] offset:{mt*32}")
                if mt == 1:
                    a("s_mov_b64 exec, s[30:31]")
        if hi + 2 < 4:
            a("s_nop 7")
            loads(hi + 2)
    a("s_waitcnt lgkmcnt(0)")
    a.nst = 8; a.stamp()
    a("s_cmp_ge_u32 s26, 4")
    a(f"s_cbranch_scc1 {name}_idle")
    ACC, vend = compute_role(a, c)
    a(f"s_branch {name}_epi")
    a.label(f"{name}_idle")
    dma_loader_loop(a, c, issue, D, pre_issued=True)
    a.label(f"{name}_epi")
    a.nst = 20; a.stamp()
    CS = 176
    a("s_barrier")
    a("s_cmp_ge_u32 s26, 4")
    a(f"s_cbranch_scc1 {name}_e2")
    acc_to_lds(a, c, ACC, CS, 0, 'store')
    a.label(f"{name}_e2")
    a("s_barrier")
    nv = store_tile(a, c, CS, 0, 1280, 640, 512, True)
    a("s_waitcnt vmcnt(0)")
    a.stamp()
    a.label(f"{name}_end")
    a("s_endpgm")
    kernels.append((name, (256,1,1), (512,1,1), c.lds_end, 160, 64, a.text()))


def gen_z(name):
    a = Asm()
    a("s_cmp_ge_u32 s2, 96")
    a(f"s_cbranch_scc1 {name}_end")
    load_ptrs(a)
    a("s_waitcnt lgkmcnt(0)")
    srd(a, 8, ('ws', 0x1000000), 32 * 12288)
    a("s_lshl_b32 s3, s2, 8")
    a("v_add_u32 v1, s3, v0")
    a("v_lshlrev_b32 v1, 4, v1")
    for k in range(4):
        a(f"v_mov_b32 v{4+k}, 0")
    a("buffer_store_dwordx4 v[4:7], v1, s[8:11], 0 offen")
    a.label(f"{name}_end")
    a("s_endpgm")
    kernels.append((name, (96,1,1), (256,1,1), 0, 16, 0, a.text()))

if __name__ == "__main__":
    if len(sys.argv) > 2 and sys.argv[2] == 'st':
        Asm.STAMP = True
    gen_z("z_kernel")
    gen_k1("k1n_kernel")
    gen_k2("k2n_kernel")
    gen_k4("k4_kernel")
    gen_k5("k5_kernel")
    emit(sys.argv[1])
```

```python
from asmlib import *
KA = dict(x=0, wqkv=8, wphi=16, wo=24, bx=32, w1=40, w2=48, out=56, dbg=64, ws=72)
WS_PHIQ = 0x4000000
WS_KV   = 0x1000000
WS_H    = 0x1400000
WS_S    = 0x1A00000
WS_KVP  = 0x2400000
ACT_BYTES = 2048*640*2
kernels = []

def load_ptrs(a):
    a("s_load_dwordx16 s[64:79], s[0:1], 0")
    a("s_load_dwordx4 s[80:83], s[0:1], 64")
def ptr_reg(name):
    return 64 + KA[name] // 4
def srd(a, sdst, src, nbytes):
    if src[0] == 'in':
        p = ptr_reg(src[1])
        a(f"s_mov_b32 s{sdst}, s{p}")
        a(f"s_and_b32 s{sdst+1}, s{p+1}, 0xffff")
    else:
        p = ptr_reg('ws')
        a(f"s_add_u32 s{sdst}, s{p}, {src[1]}")
        a(f"s_addc_u32 s{sdst+1}, s{p+1}, 0")
        a(f"s_and_b32 s{sdst+1}, s{sdst+1}, 0xffff")
    a(f"s_mov_b32 s{sdst+2}, {nbytes}")
    a(f"s_mov_b32 s{sdst+3}, 0x00020000")
def bf16_round(a, vdst, vsrc):
    a(f"v_cvt_pk_bf16_f32 v{vdst}, v{vsrc}, v{vsrc}")
    a(f"v_lshlrev_b32 v{vdst}, 16, v{vdst}")

def emit(path):
    out = []
    for (name, grid, block, lds, nv, na, text) in kernels:
        out.append(f"; @launch kernel={name} grid=({grid[0]},{grid[1]},{grid[2]}) block=({block[0]},{block[1]},{block[2]}) lds={lds}")
    out.append('.amdgcn_target "amdgcn-amd-amdhsa--gfx950"')
    out.append(".text")
    for (name, grid, block, lds, nv, na, text) in kernels:
        out += [f".globl {name}", ".p2align 8", f".type {name},@function", f"{name}:", text]
    out.append('.section .rodata,"a"')
    for (name, grid, block, lds, nv, na, text) in kernels:
        if Asm.STAMP: nv = max(nv, 160)
        nv4 = (nv + 3) // 4 * 4
        out += [".p2align 6", f".amdhsa_kernel {name}", f"  .amdhsa_next_free_vgpr {nv4 + na}", "  .amdhsa_next_free_sgpr 96",
                f"  .amdhsa_accum_offset {nv4}", "  .amdhsa_group_segment_fixed_size 0", "  .amdhsa_kernarg_size 80",
                "  .amdhsa_user_sgpr_count 2", "  .amdhsa_user_sgpr_kernarg_segment_ptr 1",
                "  .amdhsa_system_sgpr_workgroup_id_x 1", ".end_amdhsa_kernel"]
    open(path, "w").write("\n".join(out) + "\n")

class Cfg:
    def __init__(self, MT, NT, WGM, WGN, K, lda, ldb, S, lds_base=0, a_res=None):
        self.MT, self.NT, self.WGM, self.WGN, self.K = MT, NT, WGM, WGN, K
        self.WM, self.WN = MT // WGM, NT // WGN
        self.TM, self.TN = self.WM // 16, self.WN // 16
        self.lda, self.ldb, self.S = lda, ldb, S
        self.NK = K // 64
        self.a_res = a_res
        self.ABUF = MT * 128 if a_res is None else 0
        self.RB = NT * 2
        self.BBUF = 64 * self.RB
        self.STAGE = self.ABUF + self.BBUF
        self.lds_base = lds_base
        self.lds_end = lds_base + S * self.STAGE
    def slot(self, kc):
        return self.lds_base + (kc % self.S) * self.STAGE

def compute_role(a, c, nbar_hook=None):
    TM, TN = c.TM, c.TN
    vXr, vWr, vT = 2, 4, 8
    XF = 16
    WF = XF + 2 * TM * 4
    ACC = WF + 2 * TN * 4
    nacc = TM * TN * 4
    T = vT
    if c.WGN == 1:
        a(f"s_mul_i32 s27, s26, {c.WM}")
        a("s_mov_b32 s28, 0")
    else:
        a("s_lshr_b32 s27, s26, 1")
        a("s_and_b32 s28, s26, 1")
        a(f"s_mul_i32 s27, s27, {c.WM}")
        a(f"s_mul_i32 s28, s28, {c.WN}")
    a(f"v_and_b32 v{T}, 15, v1")
    a(f"v_lshrrev_b32 v{T+1}, 4, v1")
    if c.a_res is None:
        a(f"v_lshrrev_b32 v{T+2}, 1, v1")
        a(f"v_and_b32 v{T+2}, 7, v{T+2}")
        a(f"v_xor_b32 v{T+2}, v{T+2}, v{T+1}")
        a(f"v_lshlrev_b32 v{T+2}, 4, v{T+2}")
        a(f"v_add_u32 v{T+3}, s27, v{T}")
        a(f"v_lshlrev_b32 v{T+3}, 7, v{T+3}")
        a(f"v_add_u32 v{vXr}, v{T+3}, v{T+2}")
        a(f"v_xor_b32 v{vXr+1}, 64, v{vXr}")
    else:
        off, rs = c.a_res
        a(f"v_add_u32 v{T+3}, s27, v{T}")
        a(f"v_mul_u32_u24 v{T+3}, {rs}, v{T+3}")
        a(f"v_lshl_add_u32 v{vXr}, v{T+1}, 4, v{T+3}")
        a(f"v_add_u32 v{vXr}, {off}, v{vXr}")
    a(f"v_lshrrev_b32 v{T+2}, 2, v{T}")
    a(f"v_and_b32 v{T+3}, 3, v1")
    if c.NT == 128:
        a(f"v_lshl_add_u32 v{T+4}, v{T+1}, 3, v{T+2}")
        a(f"v_lshlrev_b32 v{T+4}, 8, v{T+4}")
        a(f"v_and_b32 v{T+5}, 1, v{T+3}")
        a(f"v_lshl_add_u32 v{T+4}, v{T+5}, 3, v{T+4}")
        a(f"v_lshrrev_b32 v{T+5}, 1, v{T+3}")
        a(f"v_lshl_add_u32 v{T+4}, v{T+5}, 4, v{T+4}")
        a(f"v_and_b32 v{T+5}, 1, v{T+1}")
        a("s_lshr_b32 s29, s28, 6")
        a(f"v_xor_b32 v{T+5}, s29, v{T+5}")
        a(f"v_lshl_add_u32 v{T+4}, v{T+5}, 7, v{T+4}")
        for nt in range(TN):
            a(f"v_xor_b32 v{T+5}, {nt}, v{T+2}")
            a(f"v_lshl_add_u32 v{vWr+nt}, v{T+5}, 5, v{T+4}")
    else:
        a(f"v_and_b32 v{T+4}, 1, v{T+1}")
        a(f"v_lshlrev_b32 v{T+4}, 2, v{T+4}")
        a(f"v_add_u32 v{T+4}, v{T+4}, v{T+2}")
        a(f"v_lshrrev_b32 v{T+5}, 1, v{T+1}")
        a(f"v_lshl_add_u32 v{T+4}, v{T+5}, 4, v{T+4}")
        a(f"v_mul_u32_u24 v{T+4}, {c.RB}, v{T+4}")
        a("s_lshl_b32 s29, s28, 1")
        a(f"v_lshl_add_u32 v{T+5}, v{T+3}, 3, v{T+4}")
        a(f"v_add_u32 v{vWr}, s29, v{T+5}")
    for i in range(nacc):
        a(f"v_mov_b32 v{ACC+i}, 0")
    def reads(kc, ks):
        slot = c.slot(kc)
        if c.a_res is None:
            a(f"v_add_u32 v{T}, {slot}, v{vXr+ks}")
        nw = TN if c.NT == 128 else 1
        for i in range(nw):
            a(f"v_add_u32 v{T+1+i}, {slot + c.ABUF}, v{vWr+i}")
        for mt in range(TM):
            r = XF + (ks * TM + mt) * 4
            if c.a_res is None:
                a(f"ds_read_b128 v[{r}:{r+3}], v{T} offset:{mt*2048}")
            else:
                a(f"ds_read_b128 v[{r}:{r+3}], v{vXr} offset:{mt*16*c.a_res[1] + kc*128 + ks*64}")
        for nt in range(TN):
            for jh in range(2):
                r = WF + (ks * TN + nt) * 4 + jh * 2
                if c.NT == 128:
                    a(f"ds_read_b64_tr_b16 v[{r}:{r+1}], v{T+1+nt} offset:{(32*ks + 4*jh)*256}")
                else:
                    a(f"ds_read_b64_tr_b16 v[{r}:{r+1}], v{T+1} offset:{(32*ks + 8*jh)*c.RB + nt*32}")
    def mfmas(ks):
        for mt in range(TM):
            for nt in range(TN):
                xa = XF + (ks * TM + mt) * 4
                wa = WF + (ks * TN + nt) * 4
                cc = ACC + (mt * TN + nt) * 4
                a(f"v_mfma_f32_16x16x32_bf16 v[{cc}:{cc+3}], v[{wa}:{wa+3}], v[{xa}:{xa+3}], v[{cc}:{cc+3}]")
    nrd = TM + 2 * TN
    a("s_barrier")
    a.stamp()
    reads(0, 0)
    for kc in range(c.NK):
        reads(kc, 1)
        a(f"s_waitcnt lgkmcnt({nrd})")
        mfmas(0)
        a("s_waitcnt lgkmcnt(0)")
        if kc + 1 < c.NK:
            a("s_barrier")
            if kc < 3 or kc == c.NK - 2: a.stamp()
            reads(kc + 1, 0)
        mfmas(1)
    a("s_nop 15")
    return ACC, ACC + nacc

def bload_setup(a, c, lw_sgpr, nlw, gather_hp=None, T=16, vBo=2):
    nins = c.BBUF // 1024
    per = (nins + nlw - 1) // nlw
    a("s_lshl_b32 s30, s25, 1")
    a(f"s_mov_b32 s31, {c.ldb}")
    if c.NT == 128:
        for jj in range(per):
            a(f"s_mul_i32 s29, s{lw_sgpr}, 1")
            a(f"s_add_u32 s29, s29, {nlw*jj}")
            a("s_lshr_b32 s32, s29, 1")
            a("s_and_b32 s32, s32, 1")
            a("s_lshl_b32 s32, s32, 2")
            a(f"v_lshrrev_b32 v{T}, 4, v1")
            a(f"v_add_u32 v{T+1}, s32, v{T}")
            a(f"v_lshlrev_b32 v{T+1}, 1, v{T+1}")
            a(f"v_and_b32 v{T+2}, 15, v1")
            a(f"v_xor_b32 v{T+1}, v{T+1}, v{T+2}")
            if gather_hp is not None:
                a(f"v_min_u32 v{T+1}, 14, v{T+1}")
                a(f"v_mul_u32_u24 v{T+2}, 205, v{T+1}")
                a(f"v_lshrrev_b32 v{T+2}, 10, v{T+2}")
                a(f"v_mul_u32_u24 v{T+3}, 5, v{T+2}")
                a(f"v_sub_u32 v{T+3}, v{T+1}, v{T+3}")
                a(f"v_lshlrev_b32 v{T+3}, 4, v{T+3}")
                a(f"v_mul_u32_u24 v{T+2}, 1280, v{T+2}")
                a(f"s_mul_i32 s33, s{gather_hp}, 80")
                a(f"v_add3_u32 v{T+1}, v{T+2}, v{T+3}, s33")
            else:
                a(f"v_lshlrev_b32 v{T+1}, 4, v{T+1}")
                a(f"v_add_u32 v{T+1}, s30, v{T+1}")
            a("s_lshl_b32 s29, s29, 2")
            a(f"v_add_u32 v{T}, s29, v{T}")
            a(f"v_mul_lo_u32 v{T}, v{T}, s31")
            a(f"v_add_u32 v{vBo+jj}, v{T}, v{T+1}")
    else:
        cpr = c.RB // 16
        md, sd = magic_div(cpr, 700)
        for jj in range(per):
            a(f"s_add_u32 s29, s{lw_sgpr}, {nlw*jj}")
            a(f"s_cmp_ge_u32 s29, {nins}")
            a(f"s_cselect_b32 s29, s{lw_sgpr}, s29")
            a("s_lshl_b32 s29, s29, 6")
            a(f"v_add_u32 v{T}, s29, v1")
            a(f"v_mul_u32_u24 v{T+1}, {md}, v{T}")
            a(f"v_lshrrev_b32 v{T+1}, {sd}, v{T+1}")
            a(f"v_mul_u32_u24 v{T+2}, {cpr}, v{T+1}")
            a(f"v_sub_u32 v{T+2}, v{T}, v{T+2}")
            a(f"v_and_b32 v{T+3}, 0x33, v{T+1}")
            a(f"v_and_b32 v{T+4}, 4, v{T+1}")
            a(f"v_lshlrev_b32 v{T+4}, 1, v{T+4}")
            a(f"v_or_b32 v{T+3}, v{T+3}, v{T+4}")
            a(f"v_and_b32 v{T+4}, 8, v{T+1}")
            a(f"v_lshrrev_b32 v{T+4}, 1, v{T+4}")
            a(f"v_or_b32 v{T+3}, v{T+3}, v{T+4}")
            a(f"v_mul_lo_u32 v{T+3}, v{T+3}, s31")
            a(f"v_lshlrev_b32 v{T+2}, 4, v{T+2}")
            a(f"v_add3_u32 v{vBo+jj}, v{T+3}, v{T+2}, s30")
    return per

def bload_issue(a, c, kc, lw_sgpr, nlw, per, vBo=2, srdB=12):
    nins = c.BBUF // 1024
    slot = c.slot(kc) + c.ABUF
    for jj in range(per):
        a(f"s_add_u32 s29, s{lw_sgpr}, {nlw*jj}")
        if nlw * jj + nlw > nins:
            a(f"s_cmp_ge_u32 s29, {nins}")
            a(f"s_cselect_b32 s29, s{lw_sgpr}, s29")
        a("s_lshl_b32 m0, s29, 10")
        a(f"s_add_u32 m0, m0, {slot}")
        a("s_nop 0")
        a(f"buffer_load_dwordx4 v{vBo+jj}, s[{srdB}:{srdB+3}], 0 offen lds")
        a(f"v_add_u32 v{vBo+jj}, {64*c.ldb}, v{vBo+jj}")

def aload_setup(a, c, lw_sgpr, nlw, T=16, vAo=10):
    nins = c.ABUF // 1024
    per = nins // nlw
    for jj in range(per):
        a(f"s_add_u32 s29, s{lw_sgpr}, {nlw*jj}")
        a("s_and_b32 s32, s29, 1")
        a("s_lshl_b32 s32, s32, 2")
        a(f"v_lshrrev_b32 v{T}, 3, v1")
        a(f"v_lshrrev_b32 v{T+1}, 4, v1")
        a(f"v_add_u32 v{T+1}, s32, v{T+1}")
        a(f"v_and_b32 v{T+1}, 7, v{T+1}")
        a(f"v_and_b32 v{T+2}, 7, v1")
        a(f"v_xor_b32 v{T+1}, v{T+1}, v{T+2}")
        a(f"v_lshlrev_b32 v{T+1}, 4, v{T+1}")
        a("s_lshl_b32 s29, s29, 3")
        a("s_add_u32 s29, s29, s24")
        a(f"v_add_u32 v{T}, s29, v{T}")
        a(f"s_mov_b32 s30, {c.lda}")
        a(f"v_mul_lo_u32 v{T}, v{T}, s30")
        a(f"v_add_u32 v{vAo+jj}, v{T}, v{T+1}")
    return per

def aload_issue(a, c, kc, lw_sgpr, nlw, per, vAo=10, srdA=8):
    slot = c.slot(kc)
    for jj in range(per):
        a(f"s_add_u32 s29, s{lw_sgpr}, {nlw*jj}")
        a("s_lshl_b32 m0, s29, 10")
        a(f"s_add_u32 m0, m0, {slot}")
        a("s_nop 0")
        a(f"buffer_load_dwordx4 v{vAo+jj}, s[{srdA}:{srdA+3}], 0 offen lds")
        a(f"v_add_u32 v{vAo+jj}, 128, v{vAo+jj}")

def dma_loader_role(a, c, lw_sgpr, nlw, do_a, do_b, gather_hp=None):
    perA = aload_setup(a, c, lw_sgpr, nlw) if do_a else 0
    perB = bload_setup(a, c, lw_sgpr, nlw, gather_hp) if do_b else 0
    D = perA + perB
    def issue(kc):
        if do_a: aload_issue(a, c, kc, lw_sgpr, nlw, perA)
        if do_b: bload_issue(a, c, kc, lw_sgpr, nlw, perB)
    return issue, D

def dma_loader_loop(a, c, issue, D, pre_issued=False):
    S, NK = c.S, c.NK
    if not pre_issued:
        for kc in range(min(S - 1, NK)):
            issue(kc)
    for kc in range(NK):
        a(f"s_waitcnt vmcnt({min(63, D * min(S - 2, NK - 1 - kc))})")
        a("s_barrier")
        if kc + S - 1 < NK:
            issue(kc + S - 1)

def stats_role(a, srdX, lda, stats_off, wave_sgpr):
    X = 16
    a("v_lshrrev_b32 v2, 2, v1")
    a("v_and_b32 v3, 3, v1")
    a(f"s_lshl_b32 s29, s{wave_sgpr}, 4")
    a("v_add_u32 v4, s29, v2")
    a("v_add_u32 v5, s24, v4")
    a(f"s_mov_b32 s30, {lda}")
    a("v_mul_lo_u32 v5, v5, s30")
    a("v_mul_u32_u24 v6, 320, v3")
    a("v_add_u32 v5, v5, v6")
    for k in range(20):
        a(f"buffer_load_dwordx4 v[{X+4*k}:{X+4*k+3}], v5, s[{srdX}:{srdX+3}], 0 offen offset:{16*k}")
    a("s_waitcnt vmcnt(0)")
    for j in range(4):
        a(f"v_mov_b32 v{100+j}, 0")
    for d in range(80):
        a(f"v_lshlrev_b32 v{104+(d%2)*2}, 16, v{X+d}")
        a(f"v_and_b32 v{105+(d%2)*2}, 0xffff0000, v{X+d}")
        a(f"v_add_f32 v{100+(d%2)*2}, v{100+(d%2)*2}, v{104+(d%2)*2}")
        a(f"v_add_f32 v{101+(d%2)*2}, v{101+(d%2)*2}, v{105+(d%2)*2}")
    a("v_add_f32 v100, v100, v101")
    a("v_add_f32 v102, v102, v103")
    a("v_add_f32 v7, v100, v102")
    for pat in ["quad_perm:[1,0,3,2]", "quad_perm:[2,3,0,1]"]:
        a("s_nop 1")
        a(f"v_add_f32_dpp v7, v7, v7 {pat} row_mask:0xf bank_mask:0xf")
    a("v_mul_f32 v7, 0x3acccccd, v7")
    for j in range(4):
        a(f"v_mov_b32 v{100+j}, 0")
    for d in range(80):
        a(f"v_lshlrev_b32 v{104+(d%2)*2}, 16, v{X+d}")
        a(f"v_and_b32 v{105+(d%2)*2}, 0xffff0000, v{X+d}")
        a(f"v_sub_f32 v{104+(d%2)*2}, v{104+(d%2)*2}, v7")
        a(f"v_sub_f32 v{105+(d%2)*2}, v{105+(d%2)*2}, v7")
        a(f"v_fmac_f32 v{100+(d%2)*2}, v{104+(d%2)*2}, v{104+(d%2)*2}")
        a(f"v_fmac_f32 v{101+(d%2)*2}, v{105+(d%2)*2}, v{105+(d%2)*2}")
    a("v_add_f32 v100, v100, v101")
    a("v_add_f32 v102, v102, v103")
    a("v_add_f32 v10, v100, v102")
    for pat in ["quad_perm:[1,0,3,2]", "quad_perm:[2,3,0,1]"]:
        a("s_nop 1")
        a(f"v_add_f32_dpp v10, v10, v10 {pat} row_mask:0xf bank_mask:0xf")
    a("v_mul_f32 v10, 0x3acccccd, v10")
    bf16_round(a, 7, 7)
    bf16_round(a, 10, 10)
    a("v_add_f32 v10, 0x3727c5ac, v10")
    bf16_round(a, 10, 10)
    a("v_sqrt_f32 v10, v10")
    a("s_nop 0")
    bf16_round(a, 10, 10)
    a("v_rcp_f32 v11, v10")
    a("v_lshlrev_b32 v4, 3, v4")
    a("s_nop 0")
    a("v_mov_b32 v10, v7")
    a(f"v_add_u32 v4, {stats_off}, v4")
    a("ds_write_b64 v4, v[10:11]")
    a("s_waitcnt lgkmcnt(0)")

def norm_role(a, c, srdX, stats_off, gstats=None):
    S, NK = c.S, c.NK
    R = 32
    a("v_subrev_u32 v2, 256, v0")
    a("v_lshrrev_b32 v3, 3, v2")
    a("v_and_b32 v4, 7, v2")
    a("v_add_u32 v5, s24, v3")
    a(f"s_mov_b32 s30, {c.lda}")
    a("v_mul_lo_u32 v5, v5, s30")
    a("v_lshl_add_u32 v5, v4, 4, v5")
    for i in range(1, 4):
        a(f"v_add_u32 v{5+i}, {i*32*c.lda}, v5")
    a("v_lshrrev_b32 v9, 1, v3")
    a("v_and_b32 v9, 7, v9")
    a("v_xor_b32 v9, v9, v4")
    a("v_lshlrev_b32 v9, 4, v9")
    a("v_lshl_add_u32 v9, v3, 7, v9")
    if gstats is None:
        a("v_lshlrev_b32 v10, 3, v3")
        a(f"v_add_u32 v10, {stats_off}, v10")
        for i in range(4):
            a(f"ds_read_b64 v[{16+2*i}:{17+2*i}], v10 offset:{i*32*8}")
    else:
        a("v_add_u32 v10, s24, v3")
        a("v_lshlrev_b32 v10, 3, v10")
        for i in range(4):
            a(f"buffer_load_dwordx2 v[{16+2*i}:{17+2*i}], v10, s[{abs(gstats)}:{abs(gstats)+3}], 0 offen offset:{i*32*8}")
        if gstats < 0:
            a("s_waitcnt vmcnt(0)")
            for i in range(4):
                m, q = 16 + 2 * i, 17 + 2 * i
                a(f"v_mul_f32 v{m}, 0x3acccccd, v{m}")
                a(f"v_mul_f32 v{q}, 0x3acccccd, v{q}")
                a(f"v_fma_f32 v{q}, -v{m}, v{m}, v{q}")
                a(f"v_max_f32 v{q}, 0, v{q}")
                bf16_round(a, m, m)
                bf16_round(a, q, q)
                a(f"v_add_f32 v{q}, 0x3727c5ac, v{q}")
                bf16_round(a, q, q)
                a(f"v_sqrt_f32 v{q}, v{q}")
                a("s_nop 0")
                bf16_round(a, q, q)
                a(f"v_rcp_f32 v{q}, v{q}")
            a("s_nop 0")
    def rawload(kc):
        for i in range(4):
            r = R + (kc % 2) * 16 + 4 * i
            a(f"buffer_load_dwordx4 v[{r}:{r+3}], v{5+i}, s[{srdX}:{srdX+3}], 0 offen offset:{kc*128}")
    def produce(kc, nxt):
        a(f"s_waitcnt vmcnt({4 if nxt else 0})")
        for i in range(4):
            for d in range(4):
                r = R + (kc % 2) * 16 + 4 * i + d
                a(f"v_lshlrev_b32 v11, 16, v{r}")
                a(f"v_and_b32 v12, 0xffff0000, v{r}")
                a(f"v_sub_f32 v11, v11, v{16+2*i}")
                a(f"v_sub_f32 v12, v12, v{16+2*i}")
                a(f"v_cvt_pk_bf16_f32 v13, v11, v12")
                a("v_lshlrev_b32 v11, 16, v13")
                a("v_and_b32 v12, 0xffff0000, v13")
                a(f"v_mul_f32 v11, v11, v{17+2*i}")
                a(f"v_mul_f32 v12, v12, v{17+2*i}")
                a(f"v_cvt_pk_bf16_f32 v{r}, v11, v12")
            r = R + (kc % 2) * 16 + 4 * i
            a(f"v_add_u32 v14, {c.slot(kc) + i*4096}, v9")
            a(f"ds_write_b128 v14, v[{r}:{r+3}]")
    rawload(0)
    rawload(1)
    a("s_waitcnt lgkmcnt(0)")
    nxt_load = 2
    for kc in range(min(S - 1, NK)):
        produce(kc, kc + 1 < NK)
        if nxt_load < NK:
            a("s_waitcnt lgkmcnt(0)")
            rawload(nxt_load); nxt_load += 1
    for b in range(NK):
        a("s_waitcnt lgkmcnt(0)")
        a("s_barrier")
        kc = b + S - 1
        if kc < NK:
            produce(kc, kc + 1 < NK)
            if nxt_load < NK:
                a("s_waitcnt lgkmcnt(0)")
                rawload(nxt_load); nxt_load += 1
```

```python
import sys
from g5core import *
LOG2E = 0x3fb8aa3b

def wave_id(a):
    a("v_and_b32 v1, 63, v0")
    a("v_lshrrev_b32 v2, 6, v0")
    a("s_nop 0")
    a("v_readfirstlane_b32 s26, v2")
    a("s_nop 1")

def xmap(a, ntm, ntn, bm, bn):
    nbn = ntn // bn
    a("s_and_b32 s29, s2, 7")
    a("s_lshr_b32 s30, s2, 3")
    md, sd = magic_div(nbn, 8)
    a(f"s_mul_i32 s31, s29, {md}")
    a(f"s_lshr_b32 s31, s31, {sd}")
    a(f"s_mul_i32 s32, s31, {nbn}")
    a("s_sub_u32 s32, s29, s32")
    md, sd = magic_div(bn, 64)
    a(f"s_mul_i32 s33, s30, {md}")
    a(f"s_lshr_b32 s33, s33, {sd}")
    a(f"s_mul_i32 s34, s33, {bn}")
    a("s_sub_u32 s34, s30, s34")
    a(f"s_mul_i32 s24, s31, {bm}")
    a("s_add_u32 s24, s24, s33")
    a(f"s_mul_i32 s25, s32, {bn}")
    a("s_add_u32 s25, s25, s34")

def acc_to_lds(a, c, ACC, CS, base, epi, T=8):
    a(f"v_and_b32 v{T}, 15, v1")
    a(f"v_lshrrev_b32 v{T+1}, 4, v1")
    a(f"v_add_u32 v{T}, s27, v{T}")
    a(f"v_mul_u32_u24 v{T}, {CS}, v{T}")
    a(f"v_lshlrev_b32 v{T+1}, 3, v{T+1}")
    a("s_lshl_b32 s29, s28, 1")
    a(f"v_add3_u32 v{T}, v{T}, v{T+1}, s29")
    for mt in range(c.TM):
        for nt in range(c.TN):
            cc = ACC + (mt * c.TN + nt) * 4
            if epi == 'silu':
                for i in range(4):
                    bf16_round(a, cc + i, cc + i)
                    a(f"v_mul_f32 v{T+1+i}, 0xbfb8aa3b, v{cc+i}")
                for i in range(4):
                    a(f"v_exp_f32 v{T+1+i}, v{T+1+i}")
                a("s_nop 0")
                for i in range(4):
                    a(f"v_add_f32 v{T+1+i}, 1.0, v{T+1+i}")
                for i in range(4):
                    a(f"v_rcp_f32 v{T+1+i}, v{T+1+i}")
                a("s_nop 0")
                for i in range(4):
                    a(f"v_mul_f32 v{cc+i}, v{cc+i}, v{T+1+i}")
            a(f"v_cvt_pk_bf16_f32 v{cc}, v{cc}, v{cc+1}")
            a(f"v_cvt_pk_bf16_f32 v{cc+1}, v{cc+2}, v{cc+3}")
            a(f"ds_write_b64 v{T}, v[{cc}:{cc+1}] offset:{base + mt*16*CS + nt*32}")
    a("s_waitcnt lgkmcnt(0)")

def store_tile(a, c, CS, base, ldc, N, nthreads, residual, T=8, R=16, stats_srd=None):
    cpr = c.NT // 8
    nch = c.MT * cpr
    npass = (nch + nthreads - 1) // nthreads
    md, sd = magic_div(cpr, nch + nthreads)
    a(f"s_mul_i32 s29, s24, {ldc}")
    a("s_lshl_b32 s30, s25, 1")
    a("s_add_u32 s29, s29, s30")
    for i in range(npass):
        r = R + i * 12
        a(f"v_add_u32 v{T}, {nthreads*i}, v0")
        a(f"v_mul_u32_u24 v{T+1}, {md}, v{T}")
        a(f"v_lshrrev_b32 v{T+1}, {sd}, v{T+1}")
        a(f"v_mul_u32_u24 v{T+2}, {cpr}, v{T+1}")
        a(f"v_sub_u32 v{T+2}, v{T}, v{T+2}")
        a(f"v_mul_u32_u24 v{T+3}, {CS}, v{T+1}")
        a(f"v_lshl_add_u32 v{T+3}, v{T+2}, 4, v{T+3}")
        a(f"ds_read_b128 v[{r}:{r+3}], v{T+3} offset:{base}")
        a(f"v_mul_u32_u24 v{T+3}, {ldc}, v{T+1}")
        a(f"v_lshl_add_u32 v{r+8}, v{T+2}, 4, v{T+3}")
        a(f"v_lshlrev_b32 v{T+4}, 3, v{T+2}")
        a(f"v_add_u32 v{T+4}, s25, v{T+4}")
        a(f"v_cmp_gt_u32 vcc, {nch}, v{T}")
        a("s_mov_b64 s[34:35], vcc")
        a(f"v_cmp_gt_u32 vcc, {N}, v{T+4}")
        a("s_and_b64 s[34:35], s[34:35], vcc")
        a(f"v_cndmask_b32 v{r+8}, -1, v{r+8}, s[34:35]")
        if stats_srd is not None:
            a(f"v_add_u32 v{r+9}, s24, v{T+1}")
            a(f"v_lshlrev_b32 v{r+9}, 3, v{r+9}")
            a(f"s_mov_b64 s[{52+2*i}:{53+2*i}], s[34:35]")
        if residual:
            a(f"buffer_load_dwordx4 v[{r+4}:{r+7}], v{r+8}, s[20:23], s29 offen")
    a("s_waitcnt vmcnt(0) lgkmcnt(0)")
    for i in range(npass):
        r = R + i * 12
        if residual:
            for j in range(4):
                a(f"v_lshlrev_b32 v{T}, 16, v{r+j}")
                a(f"v_and_b32 v{T+1}, 0xffff0000, v{r+j}")
                a(f"v_lshlrev_b32 v{T+2}, 16, v{r+4+j}")
                a(f"v_and_b32 v{T+3}, 0xffff0000, v{r+4+j}")
                a(f"v_add_f32 v{T}, v{T}, v{T+2}")
                a(f"v_add_f32 v{T+1}, v{T+1}, v{T+3}")
                a(f"v_cvt_pk_bf16_f32 v{r+j}, v{T}, v{T+1}")
        a(f"buffer_store_dwordx4 v[{r}:{r+3}], v{r+8}, s[16:19], s29 offen")
        if stats_srd is not None:
            a(f"v_mov_b32 v{r+10}, 0")
            a(f"v_mov_b32 v{r+11}, 0")
            for j in range(4):
                a(f"v_lshlrev_b32 v{T}, 16, v{r+j}")
                a(f"v_and_b32 v{T+1}, 0xffff0000, v{r+j}")
                a(f"v_add_f32 v{r+10}, v{r+10}, v{T}")
                a(f"v_fmac_f32 v{r+11}, v{T}, v{T}")
                a(f"v_add_f32 v{r+10}, v{r+10}, v{T+1}")
                a(f"v_fmac_f32 v{r+11}, v{T+1}, v{T+1}")
            a(f"s_and_saveexec_b64 s[30:31], s[{52+2*i}:{53+2*i}]")
            a(f"s_cbranch_execz {a.newlabel('skp')}" if False else "")
            a(f"buffer_atomic_add_f32 v{r+10}, v{r+9}, s[{stats_srd}:{stats_srd+3}], 0 offen")
            a(f"buffer_atomic_add_f32 v{r+11}, v{r+9}, s[{stats_srd}:{stats_srd+3}], 0 offen offset:4")
            a("s_mov_b64 exec, s[30:31]")
    return R + npass * 12

def ln_gemm_body(a, name, c, srdX, stats_off, gather_hp, gstats=None):
    a("s_cmp_ge_u32 s26, 8")
    a(f"s_cbranch_scc1 {name}_bl")
    if gstats is None:
        stats_role(a, srdX, c.lda, stats_off, 26)
    a.stamp()
    a("s_barrier")
    a("s_cmp_ge_u32 s26, 4")
    a(f"s_cbranch_scc1 {name}_nm")
    ACC, vend = compute_role(a, c)
    a(f"s_branch {name}_epi")
    a.label(f"{name}_nm")
    norm_role(a, c, srdX, stats_off, gstats)
    a(f"s_branch {name}_epi")
    a.label(f"{name}_bl")
    a("s_sub_u32 s37, s26, 8")
    issue, D = dma_loader_role(a, c, 37, 2, False, True, gather_hp)
    for kc in range(c.S - 1):
        issue(kc)
    a("s_barrier")
    dma_loader_loop(a, c, issue, D, pre_issued=True)
    a.label(f"{name}_epi")
    a.nst = 20; a.stamp()
    return ACC, vend

def gen_k4(name):
    a = Asm()
    c = Cfg(128, 128, 2, 2, 640, 1280, 3456, 4)
    stats_off = c.lds_end
    a("s_cmp_ge_u32 s2, 224")
    a(f"s_cbranch_scc1 {name}_end")
    load_ptrs(a)
    wave_id(a)
    a("s_waitcnt lgkmcnt(0)")
    a.stamp_init(); a.stamp()
    srd(a, 8, ('ws', WS_H), ACT_BYTES)
    srd(a, 12, ('in', 'w1'), 640 * 3456)
    srd(a, 16, ('ws', WS_S), 2048 * 3456)
    xmap(a, 16, 14, 2, 14)
    a("s_mul_i32 s24, s24, 128")
    a("s_mul_i32 s25, s25, 128")
    srd(a, 48, ('ws', WS_ST2), 2048 * 8)
    ACC, vend = ln_gemm_body(a, name, c, 8, stats_off, None, gstats=-48)
    CS = 272
    a("s_barrier")
    a("s_cmp_ge_u32 s26, 4")
    a(f"s_cbranch_scc1 {name}_e2")
    acc_to_lds(a, c, ACC, CS, 0, 'silu')
    a.label(f"{name}_e2")
    a("s_barrier")
    nv = store_tile(a, c, CS, 0, 3456, 1728, 640, False)
    a("s_waitcnt vmcnt(0)")
    a.stamp()
    a.label(f"{name}_end")
    a("s_endpgm")
    kernels.append((name, (224,1,1), (640,1,1), stats_off + 1024, max(vend, nv, 100), 0, a.text()))

def gen_k5(name):
    a = Asm()
    c = Cfg(64, 80, 4, 1, 1728, 3456, 1280, 6)
    a("s_cmp_ge_u32 s2, 256")
    a(f"s_cbranch_scc1 {name}_end")
    load_ptrs(a)
    wave_id(a)
    a("s_waitcnt lgkmcnt(0)")
    a.stamp_init(); a.stamp()
    srd(a, 8, ('ws', WS_S), 2048 * 3456)
    srd(a, 12, ('in', 'w2'), 1728 * 1280)
    srd(a, 16, ('in', 'out'), ACT_BYTES)
    srd(a, 20, ('ws', WS_H), ACT_BYTES)
    xmap(a, 32, 8, 4, 8)
    a("s_mul_i32 s24, s24, 64")
    a("s_mul_i32 s25, s25, 80")
    a("s_cmp_ge_u32 s26, 4")
    a(f"s_cbranch_scc1 {name}_ld")
    ACC, vend = compute_role(a, c)
    a(f"s_branch {name}_epi")
    a.label(f"{name}_ld")
    a("s_sub_u32 s37, s26, 4")
    issue, D = dma_loader_role(a, c, 37, 4, True, True)
    dma_loader_loop(a, c, issue, D)
    a.label(f"{name}_epi")
    a.nst = 20; a.stamp()
    CS = 176
    a("s_barrier")
    a("s_cmp_ge_u32 s26, 4")
    a(f"s_cbranch_scc1 {name}_e2")
    acc_to_lds(a, c, ACC, CS, 0, 'store')
    a.label(f"{name}_e2")
    a("s_barrier")
    nv = store_tile(a, c, CS, 0, 1280, 640, 512, True)
    a("s_waitcnt vmcnt(0)")
    a.stamp()
    a.label(f"{name}_end")
    a("s_endpgm")
    kernels.append((name, (256,1,1), (512,1,1), c.lds_end, max(vend, nv), 0, a.text()))


WS_ST = 0x1200000
WS_ST2 = 0x1210000
WS_KVF = 0x1000000
def gen_k1(name):
    a = Asm()
    c = Cfg(128, 128, 2, 2, 640, 1280, 3840, 4)
    stats_off = c.lds_end
    TS = 272; PS = 176; KS = 160
    WP0 = 0; T0 = 4096
    PQ0 = T0 + 128 * TS + 64
    PK0 = PQ0 + 128 * PS + 64
    FLAG = PK0 + 128 * KS + 256
    a("s_cmp_ge_u32 s2, 256")
    a(f"s_cbranch_scc1 {name}_end")
    load_ptrs(a)
    wave_id(a)
    a("s_waitcnt lgkmcnt(0)")
    a.stamp_init(); a.stamp()
    srd(a, 8, ('in', 'x'), ACT_BYTES)
    srd(a, 12, ('in', 'wqkv'), 640 * 3840)
    srd(a, 16, ('ws', WS_PHIQ), 128 * 32 * 2048)
    srd(a, 20, ('in', 'wphi'), 32 * 800)
    srd(a, 44, ('ws', WS_KVF), 32 * 12288)
    a("s_and_b32 s29, s2, 7")
    a("s_lshr_b32 s30, s2, 3")
    a("s_lshl_b32 s24, s29, 1")
    a("s_lshr_b32 s31, s30, 4")
    a("s_add_u32 s24, s24, s31")
    a("s_mov_b32 s41, s24")
    a("s_and_b32 s36, s30, 15")
    a("s_mov_b32 s25, 0")
    a("s_mul_i32 s24, s24, 128")
    srd(a, 48, ('ws', WS_ST), 2048 * 8)
    ACC, vend = ln_gemm_body(a, name, c, 8, stats_off, 36, gstats=48)
    a("s_mul_i32 s37, s36, 1600")
    a("v_lshlrev_b32 v3, 1, v0")
    a("buffer_load_ushort v150, v3, s[20:23], s37 offen")
    a("buffer_load_ushort v151, v3, s[20:23], s37 offen offset:800")
    a("s_barrier")
    a.stamp()
    a("v_lshlrev_b32 v2, 3, v0")
    a("v_mov_b32 v4, 0")
    a("v_mov_b32 v5, 0")
    a("v_cmp_gt_u32 vcc, 512, v0")
    a("s_and_saveexec_b64 s[30:31], vcc")
    a(f"ds_write_b64 v2, v[4:5] offset:{WP0}")
    a("s_mov_b64 exec, s[30:31]")
    a("s_cmp_ge_u32 s26, 4")
    a(f"s_cbranch_scc1 {name}_x1")
    acc_to_lds(a, c, ACC, TS, T0, 'store')
    a.label(f"{name}_x1")
    a("s_waitcnt lgkmcnt(0)")
    a("s_barrier")
    a.stamp()
    m20, s20 = magic_div(20, 700)
    a("s_waitcnt vmcnt(0)")
    a(f"v_mul_u32_u24 v3, {m20}, v0")
    a(f"v_lshrrev_b32 v3, {s20}, v3")
    a("v_mul_u32_u24 v4, 20, v3")
    a("v_sub_u32 v4, v0, v4")
    a("v_lshlrev_b32 v3, 6, v3")
    a("v_lshl_add_u32 v3, v4, 1, v3")
    a("v_cmp_gt_u32 vcc, 400, v0")
    a("s_and_saveexec_b64 s[30:31], vcc")
    a(f"ds_write_b16 v3, v150 offset:{WP0}")
    a(f"ds_write_b16 v3, v151 offset:{WP0 + 2048}")
    a("s_mov_b64 exec, s[30:31]")
    a("s_waitcnt lgkmcnt(0)")
    a("s_barrier")
    a.stamp()
    a("v_and_b32 v2, 15, v1")
    a("v_lshrrev_b32 v3, 4, v1")
    a("v_lshrrev_b32 v4, 2, v2")
    a("v_and_b32 v5, 3, v1")
    a("s_cmp_ge_u32 s26, 8")
    a(f"s_cbranch_scc1 {name}_x2")
    a("v_lshl_add_u32 v7, v3, 3, v4")
    a("v_lshlrev_b32 v7, 6, v7")
    a("v_lshl_add_u32 v7, v5, 3, v7")
    for hh in range(2):
        for mt in range(2):
            for jh in range(2):
                r = 64 + (hh * 2 + mt) * 4 + jh * 2
                a(f"ds_read_b64_tr_b16 v[{r}:{r+1}], v7 offset:{WP0 + hh*2048 + jh*256 + mt*32}")
    a("s_lshl_b32 s33, s26, 4")
    a("v_add_u32 v8, s33, v2")
    a(f"v_mul_u32_u24 v9, {TS}, v8")
    a("v_lshl_add_u32 v9, v3, 4, v9")
    a(f"v_mul_u32_u24 v10, {PS}, v8")
    a("v_lshl_add_u32 v10, v3, 3, v10")
    a("v_cmp_gt_u32 s[34:35], 16, v1")
    for sh in range(4):
        off = T0 + sh * 40
        a(f"ds_read_b64 v[{80+4*sh}:{81+4*sh}], v9 offset:{off}")
        a(f"ds_read_b64 v[{82+4*sh}:{83+4*sh}], v9 offset:{off+8}")
    a("s_waitcnt lgkmcnt(0)")
    for sh in range(4):
        hh = sh & 1
        for mt in range(2):
            wa = 64 + (hh * 2 + mt) * 4
            a(f"v_mfma_f32_16x16x32_bf16 v[{96+8*sh+4*mt}:{99+8*sh+4*mt}], v[{wa}:{wa+3}], v[{80+4*sh}:{83+4*sh}], 0")
    a("s_nop 7")
    for sh in range(4):
        for mt in range(2):
            cc = 96 + 8 * sh + 4 * mt
            a(f"v_cvt_pk_bf16_f32 v{cc}, v{cc}, v{cc+1}")
            a(f"v_cvt_pk_bf16_f32 v{cc+1}, v{cc+2}, v{cc+3}")
            if mt == 1:
                a("s_and_saveexec_b64 s[30:31], s[34:35]")
            a(f"ds_write_b64 v10, v[{cc}:{cc+1}] offset:{PQ0 + (sh*20 + 16*mt)*2}")
            if mt == 1:
                a("s_mov_b64 exec, s[30:31]")
    a.label(f"{name}_x2")
    a("s_waitcnt lgkmcnt(0)")
    a("s_barrier")
    a.stamp()
    a("s_cmp_ge_u32 s26, 8")
    a(f"s_cbranch_scc1 {name}_x3")
    a("v_lshrrev_b32 v8, 2, v0")
    a("v_and_b32 v9, 3, v0")
    a(f"v_mul_u32_u24 v10, {PS}, v8")
    a("v_mul_u32_u24 v11, 40, v9")
    a("v_add_u32 v10, v10, v11")
    for k in range(5):
        a(f"ds_read_b64 v[{16+2*k}:{17+2*k}], v10 offset:{PQ0 + 8*k}")
    a("v_and_b32 v13, 1, v9")
    a(f"v_mul_u32_u24 v12, {KS}, v8")
    a("v_mul_u32_u24 v14, 80, v13")
    a("v_add_u32 v12, v12, v14")
    a(f"v_add_u32 v12, {PK0}, v12")
    a("v_add_u32 v14, s24, v8")
    a("v_lshrrev_b32 v15, 4, v14")
    a("v_lshlrev_b32 v15, 5, v15")
    a("s_lshl_b32 s28, s36, 1")
    a("v_add3_u32 v15, v15, v13, s28")
    a("v_lshlrev_b32 v15, 11, v15")
    a("v_and_b32 v14, 15, v14")
    a("v_lshl_add_u32 v14, v14, 4, v15")
    a("s_waitcnt lgkmcnt(0)")
    for k in range(10):
        a(f"v_and_b32 v{33+2*k}, 0xffff0000, v{16+k}")
        a(f"v_lshlrev_b32 v{32+2*k}, 16, v{16+k}")
    a("v_max_f32 v28, v32, v33")
    a("v_min_f32 v29, v32, v33")
    a("v_max_f32 v30, v34, v35")
    a("v_min_f32 v31, v34, v35")
    for k in range(4, 20, 2):
        a(f"v_max_f32 v28, v28, v{32+k}")
        a(f"v_min_f32 v29, v29, v{32+k}")
        a(f"v_max_f32 v30, v30, v{33+k}")
        a(f"v_min_f32 v31, v31, v{33+k}")
    a("v_max_f32 v28, v28, v30")
    a("v_min_f32 v29, v29, v31")
    a(f"s_mov_b32 s38, {LOG2E}")
    for k in range(20):
        a(f"v_sub_f32 v{52+k}, v{32+k}, v28")
        a(f"v_sub_f32 v{72+k}, v29, v{32+k}")
    for k in range(20):
        a(f"v_mul_f32 v{52+k}, s38, v{52+k}")
        a(f"v_mul_f32 v{72+k}, s38, v{72+k}")
    for k in range(20):
        a(f"v_exp_f32 v{52+k}, v{52+k}")
        a(f"v_exp_f32 v{72+k}, v{72+k}")
    a("s_nop 0")
    a("v_add_f32 v28, v52, v53")
    a("v_add_f32 v29, v72, v73")
    a("v_add_f32 v30, v54, v55")
    a("v_add_f32 v31, v74, v75")
    for k in range(4, 20, 2):
        a(f"v_add_f32 v28, v28, v{52+k}")
        a(f"v_add_f32 v29, v29, v{72+k}")
        a(f"v_add_f32 v30, v30, v{53+k}")
        a(f"v_add_f32 v31, v31, v{73+k}")
    a("v_add_f32 v28, v28, v30")
    a("v_add_f32 v29, v29, v31")
    a("v_rcp_f32 v30, v28")
    a("v_rcp_f32 v31, v29")
    a("s_nop 0")
    for k in range(20):
        a(f"v_mul_f32 v{92+k}, v{52+k}, v30")
        a(f"v_mul_f32 v{112+k}, v{72+k}, v31")
    for k in range(20):
        a(f"v_fma_f32 v{52+k}, -v{92+k}, v28, v{52+k}")
        a(f"v_fma_f32 v{72+k}, -v{112+k}, v29, v{72+k}")
    for k in range(20):
        a(f"v_fma_f32 v{52+k}, v{52+k}, v30, v{92+k}")
        a(f"v_fma_f32 v{72+k}, v{72+k}, v31, v{112+k}")
    for k in range(20):
        src = 52 + 2 * k if k < 10 else 72 + 2 * (k - 10)
        a(f"v_cvt_pk_bf16_f32 v{16+k}, v{src}, v{src+1}")
    for k in range(4):
        a(f"v_mov_b32 v{36+k}, 0")
    a("v_cmp_gt_u32 vcc, 2, v9")
    a("s_and_saveexec_b64 s[30:31], vcc")
    for p in range(8):
        r = 16 + 4 * p if p < 5 else 36
        a(f"v_add_u32 v13, {(p>>2)*1024 + (p&3)*256}, v14")
        a(f"buffer_store_dwordx4 v[{r}:{r+3}], v13, s[16:19], 0 offen")
    a("s_andn2_b64 exec, s[30:31], exec")
    for k in range(5):
        a(f"ds_write_b128 v12, v[{16+4*k}:{19+4*k}] offset:{16*k}")
    a("s_mov_b64 exec, s[30:31]")
    a.label(f"{name}_x3")
    a("s_waitcnt lgkmcnt(0)")
    a("s_barrier")
    a.stamp()
    a("s_cmp_ge_u32 s26, 4")
    a(f"s_cbranch_scc1 {name}_x4")
    a("s_and_b32 s33, s26, 1")
    a("s_lshr_b32 s34, s26, 1")
    a("v_lshl_add_u32 v8, v3, 3, v4")
    a(f"v_mul_u32_u24 v9, {TS}, v8")
    a("v_lshl_add_u32 v9, v5, 3, v9")
    a("s_mul_i32 s35, s33, 40")
    a("s_lshl_b32 s38, s34, 5")
    a("s_add_u32 s35, s35, s38")
    a("v_add_u32 v9, s35, v9")
    a(f"v_mul_u32_u24 v10, {KS}, v8")
    a("v_lshl_add_u32 v10, v5, 3, v10")
    a("s_mul_i32 s35, s33, 80")
    a(f"s_add_u32 s35, s35, {PK0}")
    a("v_add_u32 v10, s35, v10")
    a("v_cmp_le_u32 s[38:39], 4, v2")
    a("s_cmp_eq_u32 s34, 1")
    a("s_cselect_b64 s[38:39], s[38:39], 0")
    a("v_mov_b32 v11, 0x3f803f80")
    for ks in range(4):
        for jh in range(2):
            a(f"ds_read_b64_tr_b16 v[{16+16*ks+2*jh}:{17+16*ks+2*jh}], v9 offset:{T0 + 160 + (32*ks + 4*jh)*TS}")
        for nt in range(3):
            for jh in range(2):
                a(f"ds_read_b64_tr_b16 v[{20+16*ks+4*nt+2*jh}:{21+16*ks+4*nt+2*jh}], v10 offset:{(32*ks+4*jh)*KS + nt*32}")
    a("s_waitcnt lgkmcnt(0)")
    for ks in range(4):
        for i in range(4):
            a(f"v_cndmask_b32 v{16+16*ks+i}, v{16+16*ks+i}, v11, s[38:39]")
    a("s_nop 1")
    for ks in range(4):
        for nt in range(3):
            srcc = "0" if ks == 0 else f"v[{96+4*nt}:{99+4*nt}]"
            a(f"v_mfma_f32_16x16x32_bf16 v[{96+4*nt}:{99+4*nt}], v[{16+16*ks}:{19+16*ks}], v[{20+16*ks+4*nt}:{23+16*ks+4*nt}], {srcc}")
    a("s_nop 15")
    a("s_lshl_b32 s35, s36, 1")
    a("s_add_u32 s35, s35, s33")
    a("s_mul_i32 s35, s35, 12288")
    a("v_cmp_gt_u32 s[40:41], 8, v2")
    a("v_cmp_eq_u32 s[42:43], 0, v3")
    a("v_cmp_gt_u32 s[48:49], 2, v3")
    a("s_cmp_eq_u32 s34, 0")
    a("s_cselect_b64 s[42:43], -1, s[42:43]")
    a("s_cselect_b64 s[48:49], -1, s[48:49]")
    a("s_mov_b64 s[30:31], exec")
    for nt in range(3):
        for i in range(4):
            a(f"v_add_u32 v12, {16*nt}, v2")
            a("v_lshrrev_b32 v13, 5, v12")
            a("v_and_b32 v14, 31, v12")
            a("v_lshrrev_b32 v15, 3, v14")
            a("v_and_b32 v14, 7, v14")
            a("s_lshl_b32 s38, s34, 4")
            a(f"v_lshl_add_u32 v6, v3, 2, {i}")
            a("v_add_u32 v6, s38, v6")
            a("v_cmp_eq_u32 vcc, 20, v6")
            a("v_lshrrev_b32 v7, 4, v6")
            a("v_lshl_add_u32 v7, v7, 1, v13")
            a("v_add_u32 v8, 4, v13")
            a("v_cndmask_b32 v7, v7, v8, vcc")
            a("v_and_b32 v8, 15, v6")
            a("v_cndmask_b32 v8, v8, 0, vcc")
            a("v_lshl_add_u32 v8, v15, 4, v8")
            a("v_lshl_add_u32 v7, v7, 6, v8")
            a("v_lshlrev_b32 v7, 5, v7")
            a("v_lshl_add_u32 v7, v14, 2, v7")
            src = "s[48:49]" if i == 0 else "s[42:43]"
            if nt == 2:
                a(f"s_and_b64 exec, {src}, s[40:41]")
            else:
                a(f"s_mov_b64 exec, {src}")
            a(f"buffer_atomic_add_f32 v{96+4*nt+i}, v7, s[44:47], s35 offen")
            a("s_mov_b64 exec, s[30:31]")
    a.label(f"{name}_x4")
    a.label(f"{name}_end")
    a("s_endpgm")
    kernels.append((name, (256,1,1), (640,1,1), stats_off + 1024, 160, 0, a.text()))

def gen_k2(name):
    a = Asm()
    OS = 1280 + 16
    OT = 64 * OS
    c = Cfg(64, 80, 4, 1, 640, 1280, 1280, 6, lds_base=OT, a_res=(0, OS))
    a("s_cmp_ge_u32 s2, 256")
    a(f"s_cbranch_scc1 {name}_end")
    load_ptrs(a)
    wave_id(a)
    a("s_waitcnt lgkmcnt(0)")
    a.stamp_init(); a.stamp()
    srd(a, 12, ('in', 'wo'), 640 * 1280)
    srd(a, 16, ('ws', WS_H), ACT_BYTES)
    srd(a, 20, ('in', 'x'), ACT_BYTES)
    srd(a, 8, ('ws', WS_PHIQ), 128 * 32 * 2048)
    srd(a, 44, ('ws', WS_KVF), 32 * 12288)
    xmap(a, 32, 8, 4, 8)
    a("s_mul_i32 s24, s24, 64")
    a("s_mul_i32 s25, s25, 80")
    for k in range(2, 6):
        a(f"v_mov_b32 v{k}, 0")
    a("s_cmp_lt_u32 s26, 4")
    a(f"s_cbranch_scc1 {name}_noissue")
    a("s_sub_u32 s40, s26, 4")
    issue, D = dma_loader_role(a, c, 40, 4, False, True)
    for kc in range(c.S - 1):
        issue(kc)
    a.label(f"{name}_noissue")
    a.stamp()
    a("v_and_b32 v120, 15, v1")
    a("v_lshrrev_b32 v121, 4, v1")
    a("v_lshlrev_b32 v122, 8, v120")
    a("v_lshl_add_u32 v122, v121, 5, v122")
    a("v_add_u32 v123, 4096, v122")
    a("v_lshlrev_b32 v124, 5, v121")
    a("v_add_u32 v124, 5120, v124")
    a("v_add_u32 v125, s24, v120")
    a("v_mul_u32_u24 v125, 2560, v125")
    a("v_lshl_add_u32 v125, v121, 4, v125")
    for rt in range(1, 4):
        a(f"v_add_u32 v{125+rt}, {rt*16*2560}, v125")
    a(f"v_mul_u32_u24 v129, {OS}, v120")
    a("v_lshl_add_u32 v129, v121, 3, v129")
    a("v_cmp_gt_u32 s[34:35], 16, v1")
    KVB = 16
    a("v_lshlrev_b32 v122, 4, v1")
    a("v_lshlrev_b32 v124, 5, v1")
    a("v_and_b32 v125, 48, v1")
    a("v_lshlrev_b32 v125, 5, v125")
    a("s_lshr_b32 s41, s24, 4")
    def loads(hi):
        a("s_lshl_b32 s36, s26, 2")
        a(f"s_add_u32 s36, s36, {hi}")
        a("s_mul_i32 s37, s36, 12288")
        O = KVB + (hi % 2) * 48
        for fr in range(6):
            vv = 124 if fr < 4 else 125
            a(f"v_add_u32 v123, {fr*2048}, v{vv}")
            a(f"buffer_load_dwordx4 v[{O+fr*8}:{O+fr*8+3}], v123, s[44:47], s37 offen")
            a(f"buffer_load_dwordx4 v[{O+fr*8+4}:{O+fr*8+7}], v123, s[44:47], s37 offen offset:16")
        for rt in range(4):
            a(f"s_add_u32 s38, s41, {rt}")
            a("s_lshl_b32 s38, s38, 5")
            a("s_add_u32 s38, s38, s36")
            a("s_lshl_b32 s38, s38, 11")
            for ks in range(2):
                r = (hi % 2) * 32 + (rt * 2 + ks) * 4
                a(f"buffer_load_dwordx4 a[{r}:{r+3}], v122, s[8:11], s38 offen offset:{ks*1024}")
    loads(0); loads(1)
    Cn = 132
    for hi in range(4):
        a(f"s_waitcnt vmcnt({20 if hi < 3 else 0})")
        for blk in range(6):
            for jj in range(4):
                a(f"v_cvt_pk_bf16_f32 v{KVB+(hi%2)*48+blk*8+jj}, v{KVB+(hi%2)*48+blk*8+2*jj}, v{KVB+(hi%2)*48+blk*8+2*jj+1}")
        a.stamp()
        O = KVB + (hi % 2) * 48
        a("s_lshl_b32 s36, s26, 2")
        a(f"s_add_u32 s36, s36, {hi}")
        a("s_mul_i32 s39, s36, 40")
        a("s_nop 0")
        for rt in range(4):
            dn = Cn + 8
            for mt in range(2):
                for ks in range(2):
                    b = (hi % 2) * 32 + (rt * 2 + ks) * 4
                    cc = Cn + mt * 4
                    srcc = "0" if ks == 0 else f"v[{cc}:{cc+3}]"
                    a(f"v_mfma_f32_16x16x32_bf16 v[{cc}:{cc+3}], v[{O+(mt*2+ks)*8}:{O+(mt*2+ks)*8+3}], a[{b}:{b+3}], {srcc}")
            for ks in range(2):
                b = (hi % 2) * 32 + (rt * 2 + ks) * 4
                srcc = "0" if ks == 0 else f"v[{dn}:{dn+3}]"
                a(f"v_mfma_f32_16x16x32_bf16 v[{dn}:{dn+3}], v[{O+32+ks*8}:{O+32+ks*8+3}], a[{b}:{b+3}], {srcc}")
            a("s_nop 7")
            bf16_round(a, dn + 4, dn)
            a(f"v_add_f32 v{dn+4}, 0x358637bd, v{dn+4}")
            bf16_round(a, dn + 4, dn + 4)
            a(f"v_rcp_f32 v{dn+5}, v{dn+4}")
            a(f"v_add_u32 v130, {rt*16*OS}, v129")
            a("v_add_u32 v130, s39, v130")
            for mt in range(2):
                cc = Cn + mt * 4
                for i in range(4):
                    bf16_round(a, cc + i, cc + i)
                for i in range(4):
                    a(f"v_mul_f32 v{dn+6+i}, v{cc+i}, v{dn+5}")
                for i in range(4):
                    a(f"v_fma_f32 v{cc+i}, -v{dn+6+i}, v{dn+4}, v{cc+i}")
                for i in range(4):
                    a(f"v_fma_f32 v{cc+i}, v{cc+i}, v{dn+5}, v{dn+6+i}")
                a(f"v_cvt_pk_bf16_f32 v{cc}, v{cc}, v{cc+1}")
                a(f"v_cvt_pk_bf16_f32 v{cc+1}, v{cc+2}, v{cc+3}")
                if mt == 1:
                    a("s_and_saveexec_b64 s[30:31], s[34:35]")
                a(f"ds_write_b64 v130, v[{cc}:{cc+1}] offset:{mt*32}")
                if mt == 1:
                    a("s_mov_b64 exec, s[30:31]")
        if hi + 2 < 4:
            a("s_nop 7")
            loads(hi + 2)
    a("s_waitcnt lgkmcnt(0)")
    a.nst = 8; a.stamp()
    a("s_cmp_ge_u32 s26, 4")
    a(f"s_cbranch_scc1 {name}_idle")
    ACC, vend = compute_role(a, c)
    a(f"s_branch {name}_epi")
    a.label(f"{name}_idle")
    dma_loader_loop(a, c, issue, D, pre_issued=True)
    a.label(f"{name}_epi")
    a.nst = 20; a.stamp()
    CS = 176
    a("s_barrier")
    a("s_cmp_ge_u32 s26, 4")
    a(f"s_cbranch_scc1 {name}_e2")
    acc_to_lds(a, c, ACC, CS, 0, 'store')
    a.label(f"{name}_e2")
    a("s_barrier")
    srd(a, 48, ('ws', WS_ST2), 2048 * 8)
    nv = store_tile(a, c, CS, 0, 1280, 640, 512, True, stats_srd=48)
    a("s_waitcnt vmcnt(0)")
    a.stamp()
    a.label(f"{name}_end")
    a("s_endpgm")
    kernels.append((name, (256,1,1), (512,1,1), c.lds_end, 160, 64, a.text()))


def wsum(a, v):
    for pat in ["quad_perm:[1,0,3,2]", "quad_perm:[2,3,0,1]", "row_half_mirror", "row_mirror"]:
        a("s_nop 1")
        a(f"v_add_f32_dpp v{v}, v{v}, v{v} {pat} row_mask:0xf bank_mask:0xf")
    a("s_nop 1")
    for i in range(4):
        a(f"v_readlane_b32 s{20+i}, v{v}, {16*i}")
    a("s_nop 1")
    a(f"v_mov_b32 v{v}, s20")
    a(f"v_add_f32 v{v}, s21, v{v}")
    a(f"v_add_f32 v{v}, s22, v{v}")
    a(f"v_add_f32 v{v}, s23, v{v}")

def gen_z(name):
    a = Asm()
    a("s_cmp_ge_u32 s2, 512")
    a(f"s_cbranch_scc1 {name}_end")
    load_ptrs(a)
    a("s_waitcnt lgkmcnt(0)")
    srd(a, 8, ('ws', 0x1000000), 32 * 12288)
    srd(a, 12, ('in', 'x'), ACT_BYTES)
    srd(a, 16, ('ws', WS_ST), 2048 * 8)
    a("v_lshrrev_b32 v1, 6, v0")
    a("v_and_b32 v2, 63, v0")
    a("s_lshl_b32 s3, s2, 2")
    a("v_add_u32 v1, s3, v1")
    a("v_mul_u32_u24 v3, 0x500, v1")
    a("v_mul_u32_u24 v4, 20, v2")
    a("v_add_u32 v3, v3, v4")
    a("buffer_load_dwordx4 v[8:11], v3, s[12:15], 0 offen")
    a("buffer_load_dword v12, v3, s[12:15], 0 offen offset:16")
    a("s_lshl_b32 s3, s2, 8")
    a("v_add_u32 v5, s3, v0")
    a("v_lshlrev_b32 v5, 4, v5")
    for k in range(4):
        a(f"v_mov_b32 v{28+k}, 0")
    a("buffer_store_dwordx4 v[28:31], v5, s[8:11], 0 offen")
    srd(a, 24, ('ws', WS_ST2), 2048 * 8)
    a("buffer_store_dwordx4 v[28:31], v5, s[24:27], 0 offen")
    a("s_waitcnt vmcnt(2)")
    for k in range(5):
        a(f"v_lshlrev_b32 v{16+2*k}, 16, v{8+k}")
        a(f"v_and_b32 v{17+2*k}, 0xffff0000, v{8+k}")
    a("v_add_f32 v6, v16, v17")
    for k in range(2, 10):
        a(f"v_add_f32 v6, v6, v{16+k}")
    wsum(a, 6)
    a("v_mul_f32 v6, 0x3acccccd, v6")
    a("v_sub_f32 v7, v16, v6")
    a("v_mul_f32 v13, v7, v7")
    for k in range(1, 10):
        a(f"v_sub_f32 v7, v{16+k}, v6")
        a("v_fmac_f32 v13, v7, v7")
    wsum(a, 13)
    a("v_mul_f32 v13, 0x3acccccd, v13")
    bf16_round(a, 6, 6)
    bf16_round(a, 13, 13)
    a("v_add_f32 v13, 0x3727c5ac, v13")
    bf16_round(a, 13, 13)
    a("v_sqrt_f32 v13, v13")
    a("s_nop 0")
    bf16_round(a, 13, 13)
    a("v_rcp_f32 v7, v13")
    a("v_lshlrev_b32 v1, 3, v1")
    a("v_cmp_eq_u32 vcc, 0, v2")
    a("s_and_saveexec_b64 s[30:31], vcc")
    a("buffer_store_dwordx2 v[6:7], v1, s[16:19], 0 offen")
    a.label(f"{name}_end")
    a("s_endpgm")
    kernels.append((name, (512,1,1), (256,1,1), 0, 32, 0, a.text()))

if __name__ == "__main__":
    if len(sys.argv) > 2 and sys.argv[2] == 'st':
        Asm.STAMP = True
    gen_z("z_kernel")
    gen_k1("k1n_kernel")
    gen_k2("k2n_kernel")
    gen_k4("k4_kernel")
    gen_k5("k5_kernel")
    emit(sys.argv[1])
```

```python
import sys
from g5core import *
LOG2E = 0x3fb8aa3b

def wave_id(a):
    a("v_and_b32 v1, 63, v0")
    a("v_lshrrev_b32 v2, 6, v0")
    a("s_nop 0")
    a("v_readfirstlane_b32 s26, v2")
    a("s_nop 1")

def xmap(a, ntm, ntn, bm, bn):
    nbn = ntn // bn
    a("s_and_b32 s29, s2, 7")
    a("s_lshr_b32 s30, s2, 3")
    md, sd = magic_div(nbn, 8)
    a(f"s_mul_i32 s31, s29, {md}")
    a(f"s_lshr_b32 s31, s31, {sd}")
    a(f"s_mul_i32 s32, s31, {nbn}")
    a("s_sub_u32 s32, s29, s32")
    md, sd = magic_div(bn, 64)
    a(f"s_mul_i32 s33, s30, {md}")
    a(f"s_lshr_b32 s33, s33, {sd}")
    a(f"s_mul_i32 s34, s33, {bn}")
    a("s_sub_u32 s34, s30, s34")
    a(f"s_mul_i32 s24, s31, {bm}")
    a("s_add_u32 s24, s24, s33")
    a(f"s_mul_i32 s25, s32, {bn}")
    a("s_add_u32 s25, s25, s34")

def acc_to_lds(a, c, ACC, CS, base, epi, T=8):
    a(f"v_and_b32 v{T}, 15, v1")
    a(f"v_lshrrev_b32 v{T+1}, 4, v1")
    a(f"v_add_u32 v{T}, s27, v{T}")
    a(f"v_mul_u32_u24 v{T}, {CS}, v{T}")
    a(f"v_lshlrev_b32 v{T+1}, 3, v{T+1}")
    a("s_lshl_b32 s29, s28, 1")
    a(f"v_add3_u32 v{T}, v{T}, v{T+1}, s29")
    for mt in range(c.TM):
        for nt in range(c.TN):
            cc = ACC + (mt * c.TN + nt) * 4
            if epi == 'silu':
                for i in range(4):
                    bf16_round(a, cc + i, cc + i)
                    a(f"v_mul_f32 v{T+1+i}, 0xbfb8aa3b, v{cc+i}")
                for i in range(4):
                    a(f"v_exp_f32 v{T+1+i}, v{T+1+i}")
                a("s_nop 0")
                for i in range(4):
                    a(f"v_add_f32 v{T+1+i}, 1.0, v{T+1+i}")
                for i in range(4):
                    a(f"v_rcp_f32 v{T+1+i}, v{T+1+i}")
                a("s_nop 0")
                for i in range(4):
                    a(f"v_mul_f32 v{cc+i}, v{cc+i}, v{T+1+i}")
            a(f"v_cvt_pk_bf16_f32 v{cc}, v{cc}, v{cc+1}")
            a(f"v_cvt_pk_bf16_f32 v{cc+1}, v{cc+2}, v{cc+3}")
            a(f"ds_write_b64 v{T}, v[{cc}:{cc+1}] offset:{base + mt*16*CS + nt*32}")
    a("s_waitcnt lgkmcnt(0)")

def store_tile(a, c, CS, base, ldc, N, nthreads, residual, T=8, R=16, stats_srd=None):
    cpr = c.NT // 8
    nch = c.MT * cpr
    npass = (nch + nthreads - 1) // nthreads
    md, sd = magic_div(cpr, nch + nthreads)
    a(f"s_mul_i32 s29, s24, {ldc}")
    a("s_lshl_b32 s30, s25, 1")
    a("s_add_u32 s29, s29, s30")
    for i in range(npass):
        r = R + i * 12
        a(f"v_add_u32 v{T}, {nthreads*i}, v0")
        a(f"v_mul_u32_u24 v{T+1}, {md}, v{T}")
        a(f"v_lshrrev_b32 v{T+1}, {sd}, v{T+1}")
        a(f"v_mul_u32_u24 v{T+2}, {cpr}, v{T+1}")
        a(f"v_sub_u32 v{T+2}, v{T}, v{T+2}")
        a(f"v_mul_u32_u24 v{T+3}, {CS}, v{T+1}")
        a(f"v_lshl_add_u32 v{T+3}, v{T+2}, 4, v{T+3}")
        a(f"ds_read_b128 v[{r}:{r+3}], v{T+3} offset:{base}")
        a(f"v_mul_u32_u24 v{T+3}, {ldc}, v{T+1}")
        a(f"v_lshl_add_u32 v{r+8}, v{T+2}, 4, v{T+3}")
        a(f"v_lshlrev_b32 v{T+4}, 3, v{T+2}")
        a(f"v_add_u32 v{T+4}, s25, v{T+4}")
        a(f"v_cmp_gt_u32 vcc, {nch}, v{T}")
        a("s_mov_b64 s[34:35], vcc")
        a(f"v_cmp_gt_u32 vcc, {N}, v{T+4}")
        a("s_and_b64 s[34:35], s[34:35], vcc")
        a(f"v_cndmask_b32 v{r+8}, -1, v{r+8}, s[34:35]")
        if stats_srd is not None:
            a(f"v_lshlrev_b32 v{r+9}, 3, v{T+1}")
            a(f"v_add_u32 v{r+9}, 16384, v{r+9}")
            a(f"s_mov_b64 s[{52+2*i}:{53+2*i}], s[34:35]")
        if residual:
            a(f"buffer_load_dwordx4 v[{r+4}:{r+7}], v{r+8}, s[20:23], s29 offen")
    a("s_waitcnt vmcnt(0) lgkmcnt(0)")
    for i in range(npass):
        r = R + i * 12
        if residual:
            for j in range(4):
                a(f"v_lshlrev_b32 v{T}, 16, v{r+j}")
                a(f"v_and_b32 v{T+1}, 0xffff0000, v{r+j}")
                a(f"v_lshlrev_b32 v{T+2}, 16, v{r+4+j}")
                a(f"v_and_b32 v{T+3}, 0xffff0000, v{r+4+j}")
                a(f"v_add_f32 v{T}, v{T}, v{T+2}")
                a(f"v_add_f32 v{T+1}, v{T+1}, v{T+3}")
                a(f"v_cvt_pk_bf16_f32 v{r+j}, v{T}, v{T+1}")
        a(f"buffer_store_dwordx4 v[{r}:{r+3}], v{r+8}, s[16:19], s29 offen")
        if stats_srd is not None:
            a(f"v_mov_b32 v{r+10}, 0")
            a(f"v_mov_b32 v{r+11}, 0")
            for j in range(4):
                a(f"v_lshlrev_b32 v{T}, 16, v{r+j}")
                a(f"v_and_b32 v{T+1}, 0xffff0000, v{r+j}")
                a(f"v_add_f32 v{r+10}, v{r+10}, v{T}")
                a(f"v_fmac_f32 v{r+11}, v{T}, v{T}")
                a(f"v_add_f32 v{r+10}, v{r+10}, v{T+1}")
                a(f"v_fmac_f32 v{r+11}, v{T+1}, v{T+1}")
            a(f"s_and_saveexec_b64 s[30:31], s[{52+2*i}:{53+2*i}]")
            a(f"s_cbranch_execz {a.newlabel('skp')}" if False else "")
            a(f"ds_add_f32 v{r+9}, v{r+10}")
            a(f"ds_add_f32 v{r+9}, v{r+11} offset:4")
            a("s_mov_b64 exec, s[30:31]")
    if stats_srd is not None:
        a("s_waitcnt lgkmcnt(0)")
        a("s_barrier")
        a(f"v_lshlrev_b32 v{T}, 2, v0")
        a(f"ds_read_b32 v{T+1}, v{T} offset:16384")
        a(f"s_lshl_b32 s30, s24, 3")
        a(f"v_cmp_gt_u32 vcc, {2*c.MT}, v0")
        a("s_and_saveexec_b64 s[30:31], vcc" if False else "s_and_saveexec_b64 s[32:33], vcc")
        a("s_waitcnt lgkmcnt(0)")
        a(f"buffer_atomic_add_f32 v{T+1}, v{T}, s[{stats_srd}:{stats_srd+3}], s30 offen")
        a("s_mov_b64 exec, s[32:33]")
    return R + npass * 12

def ln_gemm_body(a, name, c, srdX, stats_off, gather_hp, gstats=None):
    a("s_cmp_ge_u32 s26, 8")
    a(f"s_cbranch_scc1 {name}_bl")
    if gstats is None:
        stats_role(a, srdX, c.lda, stats_off, 26)
    a.stamp()
    a("s_barrier")
    a("s_cmp_ge_u32 s26, 4")
    a(f"s_cbranch_scc1 {name}_nm")
    ACC, vend = compute_role(a, c)
    a(f"s_branch {name}_epi")
    a.label(f"{name}_nm")
    norm_role(a, c, srdX, stats_off, gstats)
    a(f"s_branch {name}_epi")
    a.label(f"{name}_bl")
    a("s_sub_u32 s37, s26, 8")
    issue, D = dma_loader_role(a, c, 37, 2, False, True, gather_hp)
    for kc in range(c.S - 1):
        issue(kc)
    a("s_barrier")
    dma_loader_loop(a, c, issue, D, pre_issued=True)
    a.label(f"{name}_epi")
    a.nst = 20; a.stamp()
    return ACC, vend

def gen_k4(name):
    a = Asm()
    c = Cfg(128, 128, 2, 2, 640, 1280, 3456, 4)
    stats_off = c.lds_end
    a("s_cmp_ge_u32 s2, 224")
    a(f"s_cbranch_scc1 {name}_end")
    load_ptrs(a)
    wave_id(a)
    a("s_waitcnt lgkmcnt(0)")
    a.stamp_init(); a.stamp()
    srd(a, 8, ('ws', WS_H), ACT_BYTES)
    srd(a, 12, ('in', 'w1'), 640 * 3456)
    srd(a, 16, ('ws', WS_S), 2048 * 3456)
    xmap(a, 16, 14, 2, 14)
    a("s_mul_i32 s24, s24, 128")
    a("s_mul_i32 s25, s25, 128")
    srd(a, 48, ('ws', WS_ST2), 2048 * 8)
    ACC, vend = ln_gemm_body(a, name, c, 8, stats_off, None)
    CS = 272
    a("s_barrier")
    a("s_cmp_ge_u32 s26, 4")
    a(f"s_cbranch_scc1 {name}_e2")
    acc_to_lds(a, c, ACC, CS, 0, 'silu')
    a.label(f"{name}_e2")
    a("s_barrier")
    nv = store_tile(a, c, CS, 0, 3456, 1728, 640, False)
    a("s_waitcnt vmcnt(0)")
    a.stamp()
    a.label(f"{name}_end")
    a("s_endpgm")
    kernels.append((name, (224,1,1), (640,1,1), stats_off + 1024, max(vend, nv, 100), 0, a.text()))

def gen_k5(name):
    a = Asm()
    c = Cfg(64, 80, 4, 1, 1728, 3456, 1280, 6)
    a("s_cmp_ge_u32 s2, 256")
    a(f"s_cbranch_scc1 {name}_end")
    load_ptrs(a)
    wave_id(a)
    a("s_waitcnt lgkmcnt(0)")
    a.stamp_init(); a.stamp()
    srd(a, 8, ('ws', WS_S), 2048 * 3456)
    srd(a, 12, ('in', 'w2'), 1728 * 1280)
    srd(a, 16, ('in', 'out'), ACT_BYTES)
    srd(a, 20, ('ws', WS_H), ACT_BYTES)
    xmap(a, 32, 8, 4, 8)
    a("s_mul_i32 s24, s24, 64")
    a("s_mul_i32 s25, s25, 80")
    a("s_cmp_ge_u32 s26, 4")
    a(f"s_cbranch_scc1 {name}_ld")
    ACC, vend = compute_role(a, c)
    a(f"s_branch {name}_epi")
    a.label(f"{name}_ld")
    a("s_sub_u32 s37, s26, 4")
    issue, D = dma_loader_role(a, c, 37, 4, True, True)
    dma_loader_loop(a, c, issue, D)
    a.label(f"{name}_epi")
    a.nst = 20; a.stamp()
    CS = 176
    a("s_barrier")
    a("s_cmp_ge_u32 s26, 4")
    a(f"s_cbranch_scc1 {name}_e2")
    acc_to_lds(a, c, ACC, CS, 0, 'store')
    a.label(f"{name}_e2")
    a("s_barrier")
    nv = store_tile(a, c, CS, 0, 1280, 640, 512, True)
    a("s_waitcnt vmcnt(0)")
    a.stamp()
    a.label(f"{name}_end")
    a("s_endpgm")
    kernels.append((name, (256,1,1), (512,1,1), c.lds_end, max(vend, nv), 0, a.text()))


WS_ST = 0x1200000
WS_ST2 = 0x1210000
WS_KVF = 0x1000000
def gen_k1(name):
    a = Asm()
    c = Cfg(128, 128, 2, 2, 640, 1280, 3840, 4)
    stats_off = c.lds_end
    TS = 272; PS = 176; KS = 160
    WP0 = 0; T0 = 4096
    PQ0 = T0 + 128 * TS + 64
    PK0 = PQ0 + 128 * PS + 64
    FLAG = PK0 + 128 * KS + 256
    a("s_cmp_ge_u32 s2, 256")
    a(f"s_cbranch_scc1 {name}_end")
    load_ptrs(a)
    wave_id(a)
    a("s_waitcnt lgkmcnt(0)")
    a.stamp_init(); a.stamp()
    srd(a, 8, ('in', 'x'), ACT_BYTES)
    srd(a, 12, ('in', 'wqkv'), 640 * 3840)
    srd(a, 16, ('ws', WS_PHIQ), 128 * 32 * 2048)
    srd(a, 20, ('in', 'wphi'), 32 * 800)
    srd(a, 44, ('ws', WS_KVF), 32 * 12288)
    a("s_and_b32 s29, s2, 7")
    a("s_lshr_b32 s30, s2, 3")
    a("s_lshl_b32 s24, s29, 1")
    a("s_lshr_b32 s31, s30, 4")
    a("s_add_u32 s24, s24, s31")
    a("s_mov_b32 s41, s24")
    a("s_and_b32 s36, s30, 15")
    a("s_mov_b32 s25, 0")
    a("s_mul_i32 s24, s24, 128")
    srd(a, 48, ('ws', WS_ST), 2048 * 8)
    ACC, vend = ln_gemm_body(a, name, c, 8, stats_off, 36, gstats=48)
    a("s_mul_i32 s37, s36, 1600")
    a("v_lshlrev_b32 v3, 1, v0")
    a("buffer_load_ushort v150, v3, s[20:23], s37 offen")
    a("buffer_load_ushort v151, v3, s[20:23], s37 offen offset:800")
    a("s_barrier")
    a.stamp()
    a("v_lshlrev_b32 v2, 3, v0")
    a("v_mov_b32 v4, 0")
    a("v_mov_b32 v5, 0")
    a("v_cmp_gt_u32 vcc, 512, v0")
    a("s_and_saveexec_b64 s[30:31], vcc")
    a(f"ds_write_b64 v2, v[4:5] offset:{WP0}")
    a("s_mov_b64 exec, s[30:31]")
    a("s_cmp_ge_u32 s26, 4")
    a(f"s_cbranch_scc1 {name}_x1")
    acc_to_lds(a, c, ACC, TS, T0, 'store')
    a.label(f"{name}_x1")
    a("s_waitcnt lgkmcnt(0)")
    a("s_barrier")
    a.stamp()
    m20, s20 = magic_div(20, 700)
    a("s_waitcnt vmcnt(0)")
    a(f"v_mul_u32_u24 v3, {m20}, v0")
    a(f"v_lshrrev_b32 v3, {s20}, v3")
    a("v_mul_u32_u24 v4, 20, v3")
    a("v_sub_u32 v4, v0, v4")
    a("v_lshlrev_b32 v3, 6, v3")
    a("v_lshl_add_u32 v3, v4, 1, v3")
    a("v_cmp_gt_u32 vcc, 400, v0")
    a("s_and_saveexec_b64 s[30:31], vcc")
    a(f"ds_write_b16 v3, v150 offset:{WP0}")
    a(f"ds_write_b16 v3, v151 offset:{WP0 + 2048}")
    a("s_mov_b64 exec, s[30:31]")
    a("s_waitcnt lgkmcnt(0)")
    a("s_barrier")
    a.stamp()
    a("v_and_b32 v2, 15, v1")
    a("v_lshrrev_b32 v3, 4, v1")
    a("v_lshrrev_b32 v4, 2, v2")
    a("v_and_b32 v5, 3, v1")
    a("s_cmp_ge_u32 s26, 8")
    a(f"s_cbranch_scc1 {name}_x2")
    a("v_lshl_add_u32 v7, v3, 3, v4")
    a("v_lshlrev_b32 v7, 6, v7")
    a("v_lshl_add_u32 v7, v5, 3, v7")
    for hh in range(2):
        for mt in range(2):
            for jh in range(2):
                r = 64 + (hh * 2 + mt) * 4 + jh * 2
                a(f"ds_read_b64_tr_b16 v[{r}:{r+1}], v7 offset:{WP0 + hh*2048 + jh*256 + mt*32}")
    a("s_lshl_b32 s33, s26, 4")
    a("v_add_u32 v8, s33, v2")
    a(f"v_mul_u32_u24 v9, {TS}, v8")
    a("v_lshl_add_u32 v9, v3, 4, v9")
    a(f"v_mul_u32_u24 v10, {PS}, v8")
    a("v_lshl_add_u32 v10, v3, 3, v10")
    a("v_cmp_gt_u32 s[34:35], 16, v1")
    for sh in range(4):
        off = T0 + sh * 40
        a(f"ds_read_b64 v[{80+4*sh}:{81+4*sh}], v9 offset:{off}")
        a(f"ds_read_b64 v[{82+4*sh}:{83+4*sh}], v9 offset:{off+8}")
    a("s_waitcnt lgkmcnt(0)")
    for sh in range(4):
        hh = sh & 1
        for mt in range(2):
            wa = 64 + (hh * 2 + mt) * 4
            a(f"v_mfma_f32_16x16x32_bf16 v[{96+8*sh+4*mt}:{99+8*sh+4*mt}], v[{wa}:{wa+3}], v[{80+4*sh}:{83+4*sh}], 0")
    a("s_nop 7")
    for sh in range(4):
        for mt in range(2):
            cc = 96 + 8 * sh + 4 * mt
            a(f"v_cvt_pk_bf16_f32 v{cc}, v{cc}, v{cc+1}")
            a(f"v_cvt_pk_bf16_f32 v{cc+1}, v{cc+2}, v{cc+3}")
            if mt == 1:
                a("s_and_saveexec_b64 s[30:31], s[34:35]")
            a(f"ds_write_b64 v10, v[{cc}:{cc+1}] offset:{PQ0 + (sh*20 + 16*mt)*2}")
            if mt == 1:
                a("s_mov_b64 exec, s[30:31]")
    a.label(f"{name}_x2")
    a("s_waitcnt lgkmcnt(0)")
    a("s_barrier")
    a.stamp()
    a("s_cmp_ge_u32 s26, 8")
    a(f"s_cbranch_scc1 {name}_x3")
    a("v_lshrrev_b32 v8, 2, v0")
    a("v_and_b32 v9, 3, v0")
    a(f"v_mul_u32_u24 v10, {PS}, v8")
    a("v_mul_u32_u24 v11, 40, v9")
    a("v_add_u32 v10, v10, v11")
    for k in range(5):
        a(f"ds_read_b64 v[{16+2*k}:{17+2*k}], v10 offset:{PQ0 + 8*k}")
    a("v_and_b32 v13, 1, v9")
    a(f"v_mul_u32_u24 v12, {KS}, v8")
    a("v_mul_u32_u24 v14, 80, v13")
    a("v_add_u32 v12, v12, v14")
    a(f"v_add_u32 v12, {PK0}, v12")
    a("v_add_u32 v14, s24, v8")
    a("v_lshrrev_b32 v15, 4, v14")
    a("v_lshlrev_b32 v15, 5, v15")
    a("s_lshl_b32 s28, s36, 1")
    a("v_add3_u32 v15, v15, v13, s28")
    a("v_lshlrev_b32 v15, 11, v15")
    a("v_and_b32 v14, 15, v14")
    a("v_lshl_add_u32 v14, v14, 4, v15")
    a("s_waitcnt lgkmcnt(0)")
    for k in range(10):
        a(f"v_and_b32 v{33+2*k}, 0xffff0000, v{16+k}")
        a(f"v_lshlrev_b32 v{32+2*k}, 16, v{16+k}")
    a("v_max_f32 v28, v32, v33")
    a("v_min_f32 v29, v32, v33")
    a("v_max_f32 v30, v34, v35")
    a("v_min_f32 v31, v34, v35")
    for k in range(4, 20, 2):
        a(f"v_max_f32 v28, v28, v{32+k}")
        a(f"v_min_f32 v29, v29, v{32+k}")
        a(f"v_max_f32 v30, v30, v{33+k}")
        a(f"v_min_f32 v31, v31, v{33+k}")
    a("v_max_f32 v28, v28, v30")
    a("v_min_f32 v29, v29, v31")
    a(f"s_mov_b32 s38, {LOG2E}")
    for k in range(20):
        a(f"v_sub_f32 v{52+k}, v{32+k}, v28")
        a(f"v_sub_f32 v{72+k}, v29, v{32+k}")
    for k in range(20):
        a(f"v_mul_f32 v{52+k}, s38, v{52+k}")
        a(f"v_mul_f32 v{72+k}, s38, v{72+k}")
    for k in range(20):
        a(f"v_exp_f32 v{52+k}, v{52+k}")
        a(f"v_exp_f32 v{72+k}, v{72+k}")
    a("s_nop 0")
    a("v_add_f32 v28, v52, v53")
    a("v_add_f32 v29, v72, v73")
    a("v_add_f32 v30, v54, v55")
    a("v_add_f32 v31, v74, v75")
    for k in range(4, 20, 2):
        a(f"v_add_f32 v28, v28, v{52+k}")
        a(f"v_add_f32 v29, v29, v{72+k}")
        a(f"v_add_f32 v30, v30, v{53+k}")
        a(f"v_add_f32 v31, v31, v{73+k}")
    a("v_add_f32 v28, v28, v30")
    a("v_add_f32 v29, v29, v31")
    a("v_rcp_f32 v30, v28")
    a("v_rcp_f32 v31, v29")
    a("s_nop 0")
    for k in range(20):
        a(f"v_mul_f32 v{92+k}, v{52+k}, v30")
        a(f"v_mul_f32 v{112+k}, v{72+k}, v31")
    for k in range(20):
        a(f"v_fma_f32 v{52+k}, -v{92+k}, v28, v{52+k}")
        a(f"v_fma_f32 v{72+k}, -v{112+k}, v29, v{72+k}")
    for k in range(20):
        a(f"v_fma_f32 v{52+k}, v{52+k}, v30, v{92+k}")
        a(f"v_fma_f32 v{72+k}, v{72+k}, v31, v{112+k}")
    for k in range(20):
        src = 52 + 2 * k if k < 10 else 72 + 2 * (k - 10)
        a(f"v_cvt_pk_bf16_f32 v{16+k}, v{src}, v{src+1}")
    for k in range(4):
        a(f"v_mov_b32 v{36+k}, 0")
    a("v_cmp_gt_u32 vcc, 2, v9")
    a("s_and_saveexec_b64 s[30:31], vcc")
    for p in range(8):
        r = 16 + 4 * p if p < 5 else 36
        a(f"v_add_u32 v13, {(p>>2)*1024 + (p&3)*256}, v14")
        a(f"buffer_store_dwordx4 v[{r}:{r+3}], v13, s[16:19], 0 offen")
    a("s_andn2_b64 exec, s[30:31], exec")
    for k in range(5):
        a(f"ds_write_b128 v12, v[{16+4*k}:{19+4*k}] offset:{16*k}")
    a("s_mov_b64 exec, s[30:31]")
    a.label(f"{name}_x3")
    a("s_waitcnt lgkmcnt(0)")
    a("s_barrier")
    a.stamp()
    a("s_cmp_ge_u32 s26, 4")
    a(f"s_cbranch_scc1 {name}_x4")
    a("s_and_b32 s33, s26, 1")
    a("s_lshr_b32 s34, s26, 1")
    a("v_lshl_add_u32 v8, v3, 3, v4")
    a(f"v_mul_u32_u24 v9, {TS}, v8")
    a("v_lshl_add_u32 v9, v5, 3, v9")
    a("s_mul_i32 s35, s33, 40")
    a("s_lshl_b32 s38, s34, 5")
    a("s_add_u32 s35, s35, s38")
    a("v_add_u32 v9, s35, v9")
    a(f"v_mul_u32_u24 v10, {KS}, v8")
    a("v_lshl_add_u32 v10, v5, 3, v10")
    a("s_mul_i32 s35, s33, 80")
    a(f"s_add_u32 s35, s35, {PK0}")
    a("v_add_u32 v10, s35, v10")
    a("v_cmp_le_u32 s[38:39], 4, v2")
    a("s_cmp_eq_u32 s34, 1")
    a("s_cselect_b64 s[38:39], s[38:39], 0")
    a("v_mov_b32 v11, 0x3f803f80")
    for ks in range(4):
        for jh in range(2):
            a(f"ds_read_b64_tr_b16 v[{16+16*ks+2*jh}:{17+16*ks+2*jh}], v9 offset:{T0 + 160 + (32*ks + 4*jh)*TS}")
        for nt in range(3):
            for jh in range(2):
                a(f"ds_read_b64_tr_b16 v[{20+16*ks+4*nt+2*jh}:{21+16*ks+4*nt+2*jh}], v10 offset:{(32*ks+4*jh)*KS + nt*32}")
    a("s_waitcnt lgkmcnt(0)")
    for ks in range(4):
        for i in range(4):
            a(f"v_cndmask_b32 v{16+16*ks+i}, v{16+16*ks+i}, v11, s[38:39]")
    a("s_nop 1")
    for ks in range(4):
        for nt in range(3):
            srcc = "0" if ks == 0 else f"v[{96+4*nt}:{99+4*nt}]"
            a(f"v_mfma_f32_16x16x32_bf16 v[{96+4*nt}:{99+4*nt}], v[{16+16*ks}:{19+16*ks}], v[{20+16*ks+4*nt}:{23+16*ks+4*nt}], {srcc}")
    a("s_nop 15")
    a("s_lshl_b32 s35, s36, 1")
    a("s_add_u32 s35, s35, s33")
    a("s_mul_i32 s35, s35, 12288")
    a("v_cmp_gt_u32 s[40:41], 8, v2")
    a("v_cmp_eq_u32 s[42:43], 0, v3")
    a("v_cmp_gt_u32 s[48:49], 2, v3")
    a("s_cmp_eq_u32 s34, 0")
    a("s_cselect_b64 s[42:43], -1, s[42:43]")
    a("s_cselect_b64 s[48:49], -1, s[48:49]")
    a("s_mov_b64 s[30:31], exec")
    for nt in range(3):
        for i in range(4):
            a(f"v_add_u32 v12, {16*nt}, v2")
            a("v_lshrrev_b32 v13, 5, v12")
            a("v_and_b32 v14, 31, v12")
            a("v_lshrrev_b32 v15, 3, v14")
            a("v_and_b32 v14, 7, v14")
            a("s_lshl_b32 s38, s34, 4")
            a(f"v_lshl_add_u32 v6, v3, 2, {i}")
            a("v_add_u32 v6, s38, v6")
            a("v_cmp_eq_u32 vcc, 20, v6")
            a("v_lshrrev_b32 v7, 4, v6")
            a("v_lshl_add_u32 v7, v7, 1, v13")
            a("v_add_u32 v8, 4, v13")
            a("v_cndmask_b32 v7, v7, v8, vcc")
            a("v_and_b32 v8, 15, v6")
            a("v_cndmask_b32 v8, v8, 0, vcc")
            a("v_lshl_add_u32 v8, v15, 4, v8")
            a("v_lshl_add_u32 v7, v7, 6, v8")
            a("v_lshlrev_b32 v7, 5, v7")
            a("v_lshl_add_u32 v7, v14, 2, v7")
            src = "s[48:49]" if i == 0 else "s[42:43]"
            if nt == 2:
                a(f"s_and_b64 exec, {src}, s[40:41]")
            else:
                a(f"s_mov_b64 exec, {src}")
            a(f"buffer_atomic_add_f32 v{96+4*nt+i}, v7, s[44:47], s35 offen")
            a("s_mov_b64 exec, s[30:31]")
    a.label(f"{name}_x4")
    a.label(f"{name}_end")
    a("s_endpgm")
    kernels.append((name, (256,1,1), (640,1,1), stats_off + 1024, 160, 0, a.text()))

def gen_k2(name):
    a = Asm()
    OS = 1280 + 16
    OT = 64 * OS
    c = Cfg(64, 80, 4, 1, 640, 1280, 1280, 6, lds_base=OT, a_res=(0, OS))
    a("s_cmp_ge_u32 s2, 256")
    a(f"s_cbranch_scc1 {name}_end")
    load_ptrs(a)
    wave_id(a)
    a("s_waitcnt lgkmcnt(0)")
    a.stamp_init(); a.stamp()
    srd(a, 12, ('in', 'wo'), 640 * 1280)
    srd(a, 16, ('ws', WS_H), ACT_BYTES)
    srd(a, 20, ('in', 'x'), ACT_BYTES)
    srd(a, 8, ('ws', WS_PHIQ), 128 * 32 * 2048)
    srd(a, 44, ('ws', WS_KVF), 32 * 12288)
    xmap(a, 32, 8, 4, 8)
    a("s_mul_i32 s24, s24, 64")
    a("s_mul_i32 s25, s25, 80")
    for k in range(2, 6):
        a(f"v_mov_b32 v{k}, 0")
    a("s_cmp_lt_u32 s26, 4")
    a(f"s_cbranch_scc1 {name}_noissue")
    a("s_sub_u32 s40, s26, 4")
    issue, D = dma_loader_role(a, c, 40, 4, False, True)
    for kc in range(c.S - 1):
        issue(kc)
    a.label(f"{name}_noissue")
    a.stamp()
    a("v_and_b32 v120, 15, v1")
    a("v_lshrrev_b32 v121, 4, v1")
    a("v_lshlrev_b32 v122, 8, v120")
    a("v_lshl_add_u32 v122, v121, 5, v122")
    a("v_add_u32 v123, 4096, v122")
    a("v_lshlrev_b32 v124, 5, v121")
    a("v_add_u32 v124, 5120, v124")
    a("v_add_u32 v125, s24, v120")
    a("v_mul_u32_u24 v125, 2560, v125")
    a("v_lshl_add_u32 v125, v121, 4, v125")
    for rt in range(1, 4):
        a(f"v_add_u32 v{125+rt}, {rt*16*2560}, v125")
    a(f"v_mul_u32_u24 v129, {OS}, v120")
    a("v_lshl_add_u32 v129, v121, 3, v129")
    a("v_cmp_gt_u32 s[34:35], 16, v1")
    KVB = 16
    a("v_lshlrev_b32 v122, 4, v1")
    a("v_lshlrev_b32 v124, 5, v1")
    a("v_and_b32 v125, 48, v1")
    a("v_lshlrev_b32 v125, 5, v125")
    a("s_lshr_b32 s41, s24, 4")
    def loads(hi):
        a("s_lshl_b32 s36, s26, 2")
        a(f"s_add_u32 s36, s36, {hi}")
        a("s_mul_i32 s37, s36, 12288")
        O = KVB + (hi % 2) * 48
        for fr in range(6):
            vv = 124 if fr < 4 else 125
            a(f"v_add_u32 v123, {fr*2048}, v{vv}")
            a(f"buffer_load_dwordx4 v[{O+fr*8}:{O+fr*8+3}], v123, s[44:47], s37 offen")
            a(f"buffer_load_dwordx4 v[{O+fr*8+4}:{O+fr*8+7}], v123, s[44:47], s37 offen offset:16")
        for rt in range(4):
            a(f"s_add_u32 s38, s41, {rt}")
            a("s_lshl_b32 s38, s38, 5")
            a("s_add_u32 s38, s38, s36")
            a("s_lshl_b32 s38, s38, 11")
            for ks in range(2):
                r = (hi % 2) * 32 + (rt * 2 + ks) * 4
                a(f"buffer_load_dwordx4 a[{r}:{r+3}], v122, s[8:11], s38 offen offset:{ks*1024}")
    loads(0); loads(1)
    Cn = 132
    for hi in range(4):
        a(f"s_waitcnt vmcnt({20 if hi < 3 else 0})")
        for blk in range(6):
            for jj in range(4):
                a(f"v_cvt_pk_bf16_f32 v{KVB+(hi%2)*48+blk*8+jj}, v{KVB+(hi%2)*48+blk*8+2*jj}, v{KVB+(hi%2)*48+blk*8+2*jj+1}")
        a.stamp()
        O = KVB + (hi % 2) * 48
        a("s_lshl_b32 s36, s26, 2")
        a(f"s_add_u32 s36, s36, {hi}")
        a("s_mul_i32 s39, s36, 40")
        a("s_nop 0")
        for rt in range(4):
            dn = Cn + 8
            for mt in range(2):
                for ks in range(2):
                    b = (hi % 2) * 32 + (rt * 2 + ks) * 4
                    cc = Cn + mt * 4
                    srcc = "0" if ks == 0 else f"v[{cc}:{cc+3}]"
                    a(f"v_mfma_f32_16x16x32_bf16 v[{cc}:{cc+3}], v[{O+(mt*2+ks)*8}:{O+(mt*2+ks)*8+3}], a[{b}:{b+3}], {srcc}")
            for ks in range(2):
                b = (hi % 2) * 32 + (rt * 2 + ks) * 4
                srcc = "0" if ks == 0 else f"v[{dn}:{dn+3}]"
                a(f"v_mfma_f32_16x16x32_bf16 v[{dn}:{dn+3}], v[{O+32+ks*8}:{O+32+ks*8+3}], a[{b}:{b+3}], {srcc}")
            a("s_nop 7")
            bf16_round(a, dn + 4, dn)
            a(f"v_add_f32 v{dn+4}, 0x358637bd, v{dn+4}")
            bf16_round(a, dn + 4, dn + 4)
            a(f"v_rcp_f32 v{dn+5}, v{dn+4}")
            a(f"v_add_u32 v130, {rt*16*OS}, v129")
            a("v_add_u32 v130, s39, v130")
            for mt in range(2):
                cc = Cn + mt * 4
                for i in range(4):
                    bf16_round(a, cc + i, cc + i)
                for i in range(4):
                    a(f"v_mul_f32 v{dn+6+i}, v{cc+i}, v{dn+5}")
                for i in range(4):
                    a(f"v_fma_f32 v{cc+i}, -v{dn+6+i}, v{dn+4}, v{cc+i}")
                for i in range(4):
                    a(f"v_fma_f32 v{cc+i}, v{cc+i}, v{dn+5}, v{dn+6+i}")
                a(f"v_cvt_pk_bf16_f32 v{cc}, v{cc}, v{cc+1}")
                a(f"v_cvt_pk_bf16_f32 v{cc+1}, v{cc+2}, v{cc+3}")
                if mt == 1:
                    a("s_and_saveexec_b64 s[30:31], s[34:35]")
                a(f"ds_write_b64 v130, v[{cc}:{cc+1}] offset:{mt*32}")
                if mt == 1:
                    a("s_mov_b64 exec, s[30:31]")
        if hi + 2 < 4:
            a("s_nop 7")
            loads(hi + 2)
    a("s_waitcnt lgkmcnt(0)")
    a.nst = 8; a.stamp()
    a("s_cmp_ge_u32 s26, 4")
    a(f"s_cbranch_scc1 {name}_idle")
    ACC, vend = compute_role(a, c)
    a(f"s_branch {name}_epi")
    a.label(f"{name}_idle")
    dma_loader_loop(a, c, issue, D, pre_issued=True)
    a.label(f"{name}_epi")
    a.nst = 20; a.stamp()
    CS = 176
    a("s_barrier")
    a("s_cmp_ge_u32 s26, 4")
    a(f"s_cbranch_scc1 {name}_e2")
    acc_to_lds(a, c, ACC, CS, 0, 'store')
    a.label(f"{name}_e2")
    a("v_lshlrev_b32 v8, 2, v0")
    a("v_mov_b32 v9, 0")
    a("ds_write_b32 v8, v9 offset:16384")
    a("s_waitcnt lgkmcnt(0)")
    a("s_barrier")
    srd(a, 48, ('ws', WS_ST2), 2048 * 8)
    nv = store_tile(a, c, CS, 0, 1280, 640, 512, True)
    a("s_waitcnt vmcnt(0)")
    a.stamp()
    a.label(f"{name}_end")
    a("s_endpgm")
    kernels.append((name, (256,1,1), (512,1,1), c.lds_end, 160, 64, a.text()))


def wsum(a, v):
    for pat in ["quad_perm:[1,0,3,2]", "quad_perm:[2,3,0,1]", "row_half_mirror", "row_mirror"]:
        a("s_nop 1")
        a(f"v_add_f32_dpp v{v}, v{v}, v{v} {pat} row_mask:0xf bank_mask:0xf")
    a("s_nop 1")
    for i in range(4):
        a(f"v_readlane_b32 s{20+i}, v{v}, {16*i}")
    a("s_nop 1")
    a(f"v_mov_b32 v{v}, s20")
    a(f"v_add_f32 v{v}, s21, v{v}")
    a(f"v_add_f32 v{v}, s22, v{v}")
    a(f"v_add_f32 v{v}, s23, v{v}")

def gen_z(name):
    a = Asm()
    a("s_cmp_ge_u32 s2, 512")
    a(f"s_cbranch_scc1 {name}_end")
    load_ptrs(a)
    a("s_waitcnt lgkmcnt(0)")
    srd(a, 8, ('ws', 0x1000000), 32 * 12288)
    srd(a, 12, ('in', 'x'), ACT_BYTES)
    srd(a, 16, ('ws', WS_ST), 2048 * 8)
    a("v_lshrrev_b32 v1, 6, v0")
    a("v_and_b32 v2, 63, v0")
    a("s_lshl_b32 s3, s2, 2")
    a("v_add_u32 v1, s3, v1")
    a("v_mul_u32_u24 v3, 0x500, v1")
    a("v_mul_u32_u24 v4, 20, v2")
    a("v_add_u32 v3, v3, v4")
    a("buffer_load_dwordx4 v[8:11], v3, s[12:15], 0 offen")
    a("buffer_load_dword v12, v3, s[12:15], 0 offen offset:16")
    a("s_lshl_b32 s3, s2, 8")
    a("v_add_u32 v5, s3, v0")
    a("v_lshlrev_b32 v5, 4, v5")
    for k in range(4):
        a(f"v_mov_b32 v{28+k}, 0")
    a("buffer_store_dwordx4 v[28:31], v5, s[8:11], 0 offen")
    srd(a, 24, ('ws', WS_ST2), 2048 * 8)
    a("buffer_store_dwordx4 v[28:31], v5, s[24:27], 0 offen")
    a("s_waitcnt vmcnt(2)")
    for k in range(5):
        a(f"v_lshlrev_b32 v{16+2*k}, 16, v{8+k}")
        a(f"v_and_b32 v{17+2*k}, 0xffff0000, v{8+k}")
    a("v_add_f32 v6, v16, v17")
    for k in range(2, 10):
        a(f"v_add_f32 v6, v6, v{16+k}")
    wsum(a, 6)
    a("v_mul_f32 v6, 0x3acccccd, v6")
    a("v_sub_f32 v7, v16, v6")
    a("v_mul_f32 v13, v7, v7")
    for k in range(1, 10):
        a(f"v_sub_f32 v7, v{16+k}, v6")
        a("v_fmac_f32 v13, v7, v7")
    wsum(a, 13)
    a("v_mul_f32 v13, 0x3acccccd, v13")
    bf16_round(a, 6, 6)
    bf16_round(a, 13, 13)
    a("v_add_f32 v13, 0x3727c5ac, v13")
    bf16_round(a, 13, 13)
    a("v_sqrt_f32 v13, v13")
    a("s_nop 0")
    bf16_round(a, 13, 13)
    a("v_rcp_f32 v7, v13")
    a("v_lshlrev_b32 v1, 3, v1")
    a("v_cmp_eq_u32 vcc, 0, v2")
    a("s_and_saveexec_b64 s[30:31], vcc")
    a("buffer_store_dwordx2 v[6:7], v1, s[16:19], 0 offen")
    a.label(f"{name}_end")
    a("s_endpgm")
    kernels.append((name, (512,1,1), (256,1,1), 0, 32, 0, a.text()))

if __name__ == "__main__":
    if len(sys.argv) > 2 and sys.argv[2] == 'st':
        Asm.STAMP = True
    gen_z("z_kernel")
    gen_k1("k1n_kernel")
    gen_k2("k2n_kernel")
    gen_k4("k4_kernel")
    gen_k5("k5_kernel")
    emit(sys.argv[1])
```

```python
import sys
from g5core import *
LOG2E = 0x3fb8aa3b

def wave_id(a):
    a("v_and_b32 v1, 63, v0")
    a("v_lshrrev_b32 v2, 6, v0")
    a("s_nop 0")
    a("v_readfirstlane_b32 s26, v2")
    a("s_nop 1")

def xmap(a, ntm, ntn, bm, bn):
    nbn = ntn // bn
    a("s_and_b32 s29, s2, 7")
    a("s_lshr_b32 s30, s2, 3")
    md, sd = magic_div(nbn, 8)
    a(f"s_mul_i32 s31, s29, {md}")
    a(f"s_lshr_b32 s31, s31, {sd}")
    a(f"s_mul_i32 s32, s31, {nbn}")
    a("s_sub_u32 s32, s29, s32")
    md, sd = magic_div(bn, 64)
    a(f"s_mul_i32 s33, s30, {md}")
    a(f"s_lshr_b32 s33, s33, {sd}")
    a(f"s_mul_i32 s34, s33, {bn}")
    a("s_sub_u32 s34, s30, s34")
    a(f"s_mul_i32 s24, s31, {bm}")
    a("s_add_u32 s24, s24, s33")
    a(f"s_mul_i32 s25, s32, {bn}")
    a("s_add_u32 s25, s25, s34")

def acc_to_lds(a, c, ACC, CS, base, epi, T=8):
    a(f"v_and_b32 v{T}, 15, v1")
    a(f"v_lshrrev_b32 v{T+1}, 4, v1")
    a(f"v_add_u32 v{T}, s27, v{T}")
    a(f"v_mul_u32_u24 v{T}, {CS}, v{T}")
    a(f"v_lshlrev_b32 v{T+1}, 3, v{T+1}")
    a("s_lshl_b32 s29, s28, 1")
    a(f"v_add3_u32 v{T}, v{T}, v{T+1}, s29")
    for mt in range(c.TM):
        for nt in range(c.TN):
            cc = ACC + (mt * c.TN + nt) * 4
            if epi == 'silu':
                for i in range(4):
                    bf16_round(a, cc + i, cc + i)
                    a(f"v_mul_f32 v{T+1+i}, 0xbfb8aa3b, v{cc+i}")
                for i in range(4):
                    a(f"v_exp_f32 v{T+1+i}, v{T+1+i}")
                a("s_nop 0")
                for i in range(4):
                    a(f"v_add_f32 v{T+1+i}, 1.0, v{T+1+i}")
                for i in range(4):
                    a(f"v_rcp_f32 v{T+1+i}, v{T+1+i}")
                a("s_nop 0")
                for i in range(4):
                    a(f"v_mul_f32 v{cc+i}, v{cc+i}, v{T+1+i}")
            a(f"v_cvt_pk_bf16_f32 v{cc}, v{cc}, v{cc+1}")
            a(f"v_cvt_pk_bf16_f32 v{cc+1}, v{cc+2}, v{cc+3}")
            a(f"ds_write_b64 v{T}, v[{cc}:{cc+1}] offset:{base + mt*16*CS + nt*32}")
    a("s_waitcnt lgkmcnt(0)")

def store_tile(a, c, CS, base, ldc, N, nthreads, residual, T=8, R=16, stats_srd=None):
    cpr = c.NT // 8
    nch = c.MT * cpr
    npass = (nch + nthreads - 1) // nthreads
    md, sd = magic_div(cpr, nch + nthreads)
    a(f"s_mul_i32 s29, s24, {ldc}")
    a("s_lshl_b32 s30, s25, 1")
    a("s_add_u32 s29, s29, s30")
    for i in range(npass):
        r = R + i * 12
        a(f"v_add_u32 v{T}, {nthreads*i}, v0")
        a(f"v_mul_u32_u24 v{T+1}, {md}, v{T}")
        a(f"v_lshrrev_b32 v{T+1}, {sd}, v{T+1}")
        a(f"v_mul_u32_u24 v{T+2}, {cpr}, v{T+1}")
        a(f"v_sub_u32 v{T+2}, v{T}, v{T+2}")
        a(f"v_mul_u32_u24 v{T+3}, {CS}, v{T+1}")
        a(f"v_lshl_add_u32 v{T+3}, v{T+2}, 4, v{T+3}")
        a(f"ds_read_b128 v[{r}:{r+3}], v{T+3} offset:{base}")
        a(f"v_mul_u32_u24 v{T+3}, {ldc}, v{T+1}")
        a(f"v_lshl_add_u32 v{r+8}, v{T+2}, 4, v{T+3}")
        a(f"v_lshlrev_b32 v{T+4}, 3, v{T+2}")
        a(f"v_add_u32 v{T+4}, s25, v{T+4}")
        a(f"v_cmp_gt_u32 vcc, {nch}, v{T}")
        a("s_mov_b64 s[34:35], vcc")
        a(f"v_cmp_gt_u32 vcc, {N}, v{T+4}")
        a("s_and_b64 s[34:35], s[34:35], vcc")
        a(f"v_cndmask_b32 v{r+8}, -1, v{r+8}, s[34:35]")
        if stats_srd is not None:
            a(f"v_lshlrev_b32 v{r+9}, 3, v{T+1}")
            a(f"v_add_u32 v{r+9}, 16384, v{r+9}")
            a(f"s_mov_b64 s[{52+2*i}:{53+2*i}], s[34:35]")
        if residual:
            a(f"buffer_load_dwordx4 v[{r+4}:{r+7}], v{r+8}, s[20:23], s29 offen")
    a("s_waitcnt vmcnt(0) lgkmcnt(0)")
    for i in range(npass):
        r = R + i * 12
        if residual:
            for j in range(4):
                a(f"v_lshlrev_b32 v{T}, 16, v{r+j}")
                a(f"v_and_b32 v{T+1}, 0xffff0000, v{r+j}")
                a(f"v_lshlrev_b32 v{T+2}, 16, v{r+4+j}")
                a(f"v_and_b32 v{T+3}, 0xffff0000, v{r+4+j}")
                a(f"v_add_f32 v{T}, v{T}, v{T+2}")
                a(f"v_add_f32 v{T+1}, v{T+1}, v{T+3}")
                a(f"v_cvt_pk_bf16_f32 v{r+j}, v{T}, v{T+1}")
        a(f"buffer_store_dwordx4 v[{r}:{r+3}], v{r+8}, s[16:19], s29 offen")
        if stats_srd is not None:
            a(f"v_mov_b32 v{r+10}, 0")
            a(f"v_mov_b32 v{r+11}, 0")
            for j in range(4):
                a(f"v_lshlrev_b32 v{T}, 16, v{r+j}")
                a(f"v_and_b32 v{T+1}, 0xffff0000, v{r+j}")
                a(f"v_add_f32 v{r+10}, v{r+10}, v{T}")
                a(f"v_fmac_f32 v{r+11}, v{T}, v{T}")
                a(f"v_add_f32 v{r+10}, v{r+10}, v{T+1}")
                a(f"v_fmac_f32 v{r+11}, v{T+1}, v{T+1}")
            a(f"s_and_saveexec_b64 s[30:31], s[{52+2*i}:{53+2*i}]")
            a(f"s_cbranch_execz {a.newlabel('skp')}" if False else "")
            a(f"ds_add_f32 v{r+9}, v{r+10}")
            a(f"ds_add_f32 v{r+9}, v{r+11} offset:4")
            a("s_mov_b64 exec, s[30:31]")
    if stats_srd is not None:
        a("s_waitcnt lgkmcnt(0)")
        a("s_barrier")
        a(f"v_lshlrev_b32 v{T}, 2, v0")
        a(f"ds_read_b32 v{T+1}, v{T} offset:16384")
        a(f"s_lshl_b32 s30, s24, 3")
        a(f"v_cmp_gt_u32 vcc, {2*c.MT}, v0")
        a("s_and_saveexec_b64 s[30:31], vcc" if False else "s_and_saveexec_b64 s[32:33], vcc")
        a("s_waitcnt lgkmcnt(0)")
        a(f"buffer_atomic_add_f32 v{T+1}, v{T}, s[{stats_srd}:{stats_srd+3}], s30 offen")
        a("s_mov_b64 exec, s[32:33]")
    return R + npass * 12

def ln_gemm_body(a, name, c, srdX, stats_off, gather_hp, gstats=None):
    a("s_cmp_ge_u32 s26, 8")
    a(f"s_cbranch_scc1 {name}_bl")
    if gstats is None:
        stats_role(a, srdX, c.lda, stats_off, 26)
    a.stamp()
    a("s_barrier")
    a("s_cmp_ge_u32 s26, 4")
    a(f"s_cbranch_scc1 {name}_nm")
    ACC, vend = compute_role(a, c)
    a(f"s_branch {name}_epi")
    a.label(f"{name}_nm")
    norm_role(a, c, srdX, stats_off, gstats)
    a(f"s_branch {name}_epi")
    a.label(f"{name}_bl")
    a("s_sub_u32 s37, s26, 8")
    issue, D = dma_loader_role(a, c, 37, 2, False, True, gather_hp)
    for kc in range(c.S - 1):
        issue(kc)
    a("s_barrier")
    dma_loader_loop(a, c, issue, D, pre_issued=True)
    a.label(f"{name}_epi")
    a.nst = 20; a.stamp()
    return ACC, vend

def gen_k4(name):
    a = Asm()
    c = Cfg(128, 128, 2, 2, 640, 1280, 3456, 4)
    stats_off = c.lds_end
    a("s_cmp_ge_u32 s2, 224")
    a(f"s_cbranch_scc1 {name}_end")
    load_ptrs(a)
    wave_id(a)
    a("s_waitcnt lgkmcnt(0)")
    a.stamp_init(); a.stamp()
    srd(a, 8, ('ws', WS_H), ACT_BYTES)
    srd(a, 12, ('in', 'w1'), 640 * 3456)
    srd(a, 16, ('ws', WS_S), 2048 * 3456)
    xmap(a, 16, 14, 2, 14)
    a("s_mul_i32 s24, s24, 128")
    a("s_mul_i32 s25, s25, 128")
    srd(a, 48, ('ws', WS_ST2), 2048 * 8)
    ACC, vend = ln_gemm_body(a, name, c, 8, stats_off, None)
    CS = 272
    a("s_barrier")
    a("s_cmp_ge_u32 s26, 4")
    a(f"s_cbranch_scc1 {name}_e2")
    acc_to_lds(a, c, ACC, CS, 0, 'silu')
    a.label(f"{name}_e2")
    a("s_barrier")
    nv = store_tile(a, c, CS, 0, 3456, 1728, 640, False)
    a("s_waitcnt vmcnt(0)")
    a.stamp()
    a.label(f"{name}_end")
    a("s_endpgm")
    kernels.append((name, (224,1,1), (640,1,1), stats_off + 1024, max(vend, nv, 100), 0, a.text()))

def gen_k5(name):
    a = Asm()
    c = Cfg(64, 80, 4, 1, 1728, 3456, 1280, 6)
    a("s_cmp_ge_u32 s2, 256")
    a(f"s_cbranch_scc1 {name}_end")
    load_ptrs(a)
    wave_id(a)
    a("s_waitcnt lgkmcnt(0)")
    a.stamp_init(); a.stamp()
    srd(a, 8, ('ws', WS_S), 2048 * 3456)
    srd(a, 12, ('in', 'w2'), 1728 * 1280)
    srd(a, 16, ('in', 'out'), ACT_BYTES)
    srd(a, 20, ('ws', WS_H), ACT_BYTES)
    xmap(a, 32, 8, 4, 8)
    a("s_mul_i32 s24, s24, 64")
    a("s_mul_i32 s25, s25, 80")
    a("s_cmp_ge_u32 s26, 4")
    a(f"s_cbranch_scc1 {name}_ld")
    ACC, vend = compute_role(a, c)
    a(f"s_branch {name}_epi")
    a.label(f"{name}_ld")
    a("s_sub_u32 s37, s26, 4")
    issue, D = dma_loader_role(a, c, 37, 4, True, True)
    dma_loader_loop(a, c, issue, D)
    a.label(f"{name}_epi")
    a.nst = 20; a.stamp()
    CS = 176
    a("s_barrier")
    a("s_cmp_ge_u32 s26, 4")
    a(f"s_cbranch_scc1 {name}_e2")
    acc_to_lds(a, c, ACC, CS, 0, 'store')
    a.label(f"{name}_e2")
    a("s_barrier")
    nv = store_tile(a, c, CS, 0, 1280, 640, 512, True)
    a("s_waitcnt vmcnt(0)")
    a.stamp()
    a.label(f"{name}_end")
    a("s_endpgm")
    kernels.append((name, (256,1,1), (512,1,1), c.lds_end, max(vend, nv), 0, a.text()))


WS_ST = 0x1200000
WS_ST2 = 0x1210000
WS_KVF = 0x1000000
def gen_k1(name):
    a = Asm()
    c = Cfg(128, 128, 2, 2, 640, 1280, 3840, 4)
    stats_off = c.lds_end
    TS = 272; PS = 176; KS = 160
    WP0 = 0; T0 = 4096
    PQ0 = T0 + 128 * TS + 64
    PK0 = PQ0 + 128 * PS + 64
    FLAG = PK0 + 128 * KS + 256
    a("s_cmp_ge_u32 s2, 256")
    a(f"s_cbranch_scc1 {name}_end")
    load_ptrs(a)
    wave_id(a)
    a("s_waitcnt lgkmcnt(0)")
    a.stamp_init(); a.stamp()
    srd(a, 8, ('in', 'x'), ACT_BYTES)
    srd(a, 12, ('in', 'wqkv'), 640 * 3840)
    srd(a, 16, ('ws', WS_PHIQ), 128 * 32 * 2048)
    srd(a, 20, ('in', 'wphi'), 32 * 800)
    srd(a, 44, ('ws', WS_KVF), 32 * 12288)
    a("s_and_b32 s29, s2, 7")
    a("s_lshr_b32 s30, s2, 3")
    a("s_lshl_b32 s24, s29, 1")
    a("s_lshr_b32 s31, s30, 4")
    a("s_add_u32 s24, s24, s31")
    a("s_mov_b32 s41, s24")
    a("s_and_b32 s36, s30, 15")
    a("s_mov_b32 s25, 0")
    a("s_mul_i32 s24, s24, 128")
    srd(a, 48, ('ws', WS_ST), 2048 * 8)
    ACC, vend = ln_gemm_body(a, name, c, 8, stats_off, 36, gstats=48)
    a("s_mul_i32 s37, s36, 1600")
    a("v_lshlrev_b32 v3, 1, v0")
    a("buffer_load_ushort v150, v3, s[20:23], s37 offen")
    a("buffer_load_ushort v151, v3, s[20:23], s37 offen offset:800")
    a("s_barrier")
    a.stamp()
    a("v_lshlrev_b32 v2, 3, v0")
    a("v_mov_b32 v4, 0")
    a("v_mov_b32 v5, 0")
    a("v_cmp_gt_u32 vcc, 512, v0")
    a("s_and_saveexec_b64 s[30:31], vcc")
    a(f"ds_write_b64 v2, v[4:5] offset:{WP0}")
    a("s_mov_b64 exec, s[30:31]")
    a("s_cmp_ge_u32 s26, 4")
    a(f"s_cbranch_scc1 {name}_x1")
    acc_to_lds(a, c, ACC, TS, T0, 'store')
    a.label(f"{name}_x1")
    a("s_waitcnt lgkmcnt(0)")
    a("s_barrier")
    a.stamp()
    m20, s20 = magic_div(20, 700)
    a("s_waitcnt vmcnt(0)")
    a(f"v_mul_u32_u24 v3, {m20}, v0")
    a(f"v_lshrrev_b32 v3, {s20}, v3")
    a("v_mul_u32_u24 v4, 20, v3")
    a("v_sub_u32 v4, v0, v4")
    a("v_lshlrev_b32 v3, 6, v3")
    a("v_lshl_add_u32 v3, v4, 1, v3")
    a("v_cmp_gt_u32 vcc, 400, v0")
    a("s_and_saveexec_b64 s[30:31], vcc")
    a(f"ds_write_b16 v3, v150 offset:{WP0}")
    a(f"ds_write_b16 v3, v151 offset:{WP0 + 2048}")
    a("s_mov_b64 exec, s[30:31]")
    a("s_waitcnt lgkmcnt(0)")
    a("s_barrier")
    a.stamp()
    a("v_and_b32 v2, 15, v1")
    a("v_lshrrev_b32 v3, 4, v1")
    a("v_lshrrev_b32 v4, 2, v2")
    a("v_and_b32 v5, 3, v1")
    a("s_cmp_ge_u32 s26, 8")
    a(f"s_cbranch_scc1 {name}_x2")
    a("v_lshl_add_u32 v7, v3, 3, v4")
    a("v_lshlrev_b32 v7, 6, v7")
    a("v_lshl_add_u32 v7, v5, 3, v7")
    for hh in range(2):
        for mt in range(2):
            for jh in range(2):
                r = 64 + (hh * 2 + mt) * 4 + jh * 2
                a(f"ds_read_b64_tr_b16 v[{r}:{r+1}], v7 offset:{WP0 + hh*2048 + jh*256 + mt*32}")
    a("s_lshl_b32 s33, s26, 4")
    a("v_add_u32 v8, s33, v2")
    a(f"v_mul_u32_u24 v9, {TS}, v8")
    a("v_lshl_add_u32 v9, v3, 4, v9")
    a(f"v_mul_u32_u24 v10, {PS}, v8")
    a("v_lshl_add_u32 v10, v3, 3, v10")
    a("v_cmp_gt_u32 s[34:35], 16, v1")
    for sh in range(4):
        off = T0 + sh * 40
        a(f"ds_read_b64 v[{80+4*sh}:{81+4*sh}], v9 offset:{off}")
        a(f"ds_read_b64 v[{82+4*sh}:{83+4*sh}], v9 offset:{off+8}")
    a("s_waitcnt lgkmcnt(0)")
    for sh in range(4):
        hh = sh & 1
        for mt in range(2):
            wa = 64 + (hh * 2 + mt) * 4
            a(f"v_mfma_f32_16x16x32_bf16 v[{96+8*sh+4*mt}:{99+8*sh+4*mt}], v[{wa}:{wa+3}], v[{80+4*sh}:{83+4*sh}], 0")
    a("s_nop 7")
    for sh in range(4):
        for mt in range(2):
            cc = 96 + 8 * sh + 4 * mt
            a(f"v_cvt_pk_bf16_f32 v{cc}, v{cc}, v{cc+1}")
            a(f"v_cvt_pk_bf16_f32 v{cc+1}, v{cc+2}, v{cc+3}")
            if mt == 1:
                a("s_and_saveexec_b64 s[30:31], s[34:35]")
            a(f"ds_write_b64 v10, v[{cc}:{cc+1}] offset:{PQ0 + (sh*20 + 16*mt)*2}")
            if mt == 1:
                a("s_mov_b64 exec, s[30:31]")
    a.label(f"{name}_x2")
    a("s_waitcnt lgkmcnt(0)")
    a("s_barrier")
    a.stamp()
    a("s_cmp_ge_u32 s26, 8")
    a(f"s_cbranch_scc1 {name}_x3")
    a("v_lshrrev_b32 v8, 2, v0")
    a("v_and_b32 v9, 3, v0")
    a(f"v_mul_u32_u24 v10, {PS}, v8")
    a("v_mul_u32_u24 v11, 40, v9")
    a("v_add_u32 v10, v10, v11")
    for k in range(5):
        a(f"ds_read_b64 v[{16+2*k}:{17+2*k}], v10 offset:{PQ0 + 8*k}")
    a("v_and_b32 v13, 1, v9")
    a(f"v_mul_u32_u24 v12, {KS}, v8")
    a("v_mul_u32_u24 v14, 80, v13")
    a("v_add_u32 v12, v12, v14")
    a(f"v_add_u32 v12, {PK0}, v12")
    a("v_add_u32 v14, s24, v8")
    a("v_lshrrev_b32 v15, 4, v14")
    a("v_lshlrev_b32 v15, 5, v15")
    a("s_lshl_b32 s28, s36, 1")
    a("v_add3_u32 v15, v15, v13, s28")
    a("v_lshlrev_b32 v15, 11, v15")
    a("v_and_b32 v14, 15, v14")
    a("v_lshl_add_u32 v14, v14, 4, v15")
    a("s_waitcnt lgkmcnt(0)")
    for k in range(10):
        a(f"v_and_b32 v{33+2*k}, 0xffff0000, v{16+k}")
        a(f"v_lshlrev_b32 v{32+2*k}, 16, v{16+k}")
    a("v_max_f32 v28, v32, v33")
    a("v_min_f32 v29, v32, v33")
    a("v_max_f32 v30, v34, v35")
    a("v_min_f32 v31, v34, v35")
    for k in range(4, 20, 2):
        a(f"v_max_f32 v28, v28, v{32+k}")
        a(f"v_min_f32 v29, v29, v{32+k}")
        a(f"v_max_f32 v30, v30, v{33+k}")
        a(f"v_min_f32 v31, v31, v{33+k}")
    a("v_max_f32 v28, v28, v30")
    a("v_min_f32 v29, v29, v31")
    a(f"s_mov_b32 s38, {LOG2E}")
    for k in range(20):
        a(f"v_sub_f32 v{52+k}, v{32+k}, v28")
        a(f"v_sub_f32 v{72+k}, v29, v{32+k}")
    for k in range(20):
        a(f"v_mul_f32 v{52+k}, s38, v{52+k}")
        a(f"v_mul_f32 v{72+k}, s38, v{72+k}")
    for k in range(20):
        a(f"v_exp_f32 v{52+k}, v{52+k}")
        a(f"v_exp_f32 v{72+k}, v{72+k}")
    a("s_nop 0")
    a("v_add_f32 v28, v52, v53")
    a("v_add_f32 v29, v72, v73")
    a("v_add_f32 v30, v54, v55")
    a("v_add_f32 v31, v74, v75")
    for k in range(4, 20, 2):
        a(f"v_add_f32 v28, v28, v{52+k}")
        a(f"v_add_f32 v29, v29, v{72+k}")
        a(f"v_add_f32 v30, v30, v{53+k}")
        a(f"v_add_f32 v31, v31, v{73+k}")
    a("v_add_f32 v28, v28, v30")
    a("v_add_f32 v29, v29, v31")
    a("v_rcp_f32 v30, v28")
    a("v_rcp_f32 v31, v29")
    a("s_nop 0")
    for k in range(20):
        a(f"v_mul_f32 v{92+k}, v{52+k}, v30")
        a(f"v_mul_f32 v{112+k}, v{72+k}, v31")
    for k in range(20):
        a(f"v_fma_f32 v{52+k}, -v{92+k}, v28, v{52+k}")
        a(f"v_fma_f32 v{72+k}, -v{112+k}, v29, v{72+k}")
    for k in range(20):
        a(f"v_fma_f32 v{52+k}, v{52+k}, v30, v{92+k}")
        a(f"v_fma_f32 v{72+k}, v{72+k}, v31, v{112+k}")
    for k in range(20):
        src = 52 + 2 * k if k < 10 else 72 + 2 * (k - 10)
        a(f"v_cvt_pk_bf16_f32 v{16+k}, v{src}, v{src+1}")
    for k in range(4):
        a(f"v_mov_b32 v{36+k}, 0")
    a("v_cmp_gt_u32 vcc, 2, v9")
    a("s_and_saveexec_b64 s[30:31], vcc")
    for p in range(8):
        r = 16 + 4 * p if p < 5 else 36
        a(f"v_add_u32 v13, {(p>>2)*1024 + (p&3)*256}, v14")
        a(f"buffer_store_dwordx4 v[{r}:{r+3}], v13, s[16:19], 0 offen")
    a("s_andn2_b64 exec, s[30:31], exec")
    for k in range(5):
        a(f"ds_write_b128 v12, v[{16+4*k}:{19+4*k}] offset:{16*k}")
    a("s_mov_b64 exec, s[30:31]")
    a.label(f"{name}_x3")
    a("s_waitcnt lgkmcnt(0)")
    a("s_barrier")
    a.stamp()
    a("s_cmp_ge_u32 s26, 4")
    a(f"s_cbranch_scc1 {name}_x4")
    a("s_and_b32 s33, s26, 1")
    a("s_lshr_b32 s34, s26, 1")
    a("v_lshl_add_u32 v8, v3, 3, v4")
    a(f"v_mul_u32_u24 v9, {TS}, v8")
    a("v_lshl_add_u32 v9, v5, 3, v9")
    a("s_mul_i32 s35, s33, 40")
    a("s_lshl_b32 s38, s34, 5")
    a("s_add_u32 s35, s35, s38")
    a("v_add_u32 v9, s35, v9")
    a(f"v_mul_u32_u24 v10, {KS}, v8")
    a("v_lshl_add_u32 v10, v5, 3, v10")
    a("s_mul_i32 s35, s33, 80")
    a(f"s_add_u32 s35, s35, {PK0}")
    a("v_add_u32 v10, s35, v10")
    a("v_cmp_le_u32 s[38:39], 4, v2")
    a("s_cmp_eq_u32 s34, 1")
    a("s_cselect_b64 s[38:39], s[38:39], 0")
    a("v_mov_b32 v11, 0x3f803f80")
    for ks in range(4):
        for jh in range(2):
            a(f"ds_read_b64_tr_b16 v[{16+16*ks+2*jh}:{17+16*ks+2*jh}], v9 offset:{T0 + 160 + (32*ks + 4*jh)*TS}")
        for nt in range(3):
            for jh in range(2):
                a(f"ds_read_b64_tr_b16 v[{20+16*ks+4*nt+2*jh}:{21+16*ks+4*nt+2*jh}], v10 offset:{(32*ks+4*jh)*KS + nt*32}")
    a("s_waitcnt lgkmcnt(0)")
    for ks in range(4):
        for i in range(4):
            a(f"v_cndmask_b32 v{16+16*ks+i}, v{16+16*ks+i}, v11, s[38:39]")
    a("s_nop 1")
    for ks in range(4):
        for nt in range(3):
            srcc = "0" if ks == 0 else f"v[{96+4*nt}:{99+4*nt}]"
            a(f"v_mfma_f32_16x16x32_bf16 v[{96+4*nt}:{99+4*nt}], v[{16+16*ks}:{19+16*ks}], v[{20+16*ks+4*nt}:{23+16*ks+4*nt}], {srcc}")
    a("s_nop 15")
    a("s_lshl_b32 s35, s36, 1")
    a("s_add_u32 s35, s35, s33")
    a("s_mul_i32 s35, s35, 12288")
    a("v_cmp_gt_u32 s[40:41], 8, v2")
    a("v_cmp_eq_u32 s[42:43], 0, v3")
    a("v_cmp_gt_u32 s[48:49], 2, v3")
    a("s_cmp_eq_u32 s34, 0")
    a("s_cselect_b64 s[42:43], -1, s[42:43]")
    a("s_cselect_b64 s[48:49], -1, s[48:49]")
    a("s_mov_b64 s[30:31], exec")
    for nt in range(3):
        for i in range(4):
            a(f"v_add_u32 v12, {16*nt}, v2")
            a("v_lshrrev_b32 v13, 5, v12")
            a("v_and_b32 v14, 31, v12")
            a("v_lshrrev_b32 v15, 3, v14")
            a("v_and_b32 v14, 7, v14")
            a("s_lshl_b32 s38, s34, 4")
            a(f"v_lshl_add_u32 v6, v3, 2, {i}")
            a("v_add_u32 v6, s38, v6")
            a("v_cmp_eq_u32 vcc, 20, v6")
            a("v_lshrrev_b32 v7, 4, v6")
            a("v_lshl_add_u32 v7, v7, 1, v13")
            a("v_add_u32 v8, 4, v13")
            a("v_cndmask_b32 v7, v7, v8, vcc")
            a("v_and_b32 v8, 15, v6")
            a("v_cndmask_b32 v8, v8, 0, vcc")
            a("v_lshl_add_u32 v8, v15, 4, v8")
            a("v_lshl_add_u32 v7, v7, 6, v8")
            a("v_lshlrev_b32 v7, 5, v7")
            a("v_lshl_add_u32 v7, v14, 2, v7")
            src = "s[48:49]" if i == 0 else "s[42:43]"
            if nt == 2:
                a(f"s_and_b64 exec, {src}, s[40:41]")
            else:
                a(f"s_mov_b64 exec, {src}")
            a(f"buffer_atomic_add_f32 v{96+4*nt+i}, v7, s[44:47], s35 offen")
            a("s_mov_b64 exec, s[30:31]")
    a.label(f"{name}_x4")
    a.label(f"{name}_end")
    a("s_endpgm")
    kernels.append((name, (256,1,1), (640,1,1), stats_off + 1024, 160, 0, a.text()))

def gen_k2(name):
    a = Asm()
    OS = 1280 + 16
    OT = 64 * OS
    c = Cfg(64, 80, 4, 1, 640, 1280, 1280, 6, lds_base=OT, a_res=(0, OS))
    a("s_cmp_ge_u32 s2, 256")
    a(f"s_cbranch_scc1 {name}_end")
    load_ptrs(a)
    wave_id(a)
    a("s_waitcnt lgkmcnt(0)")
    a.stamp_init(); a.stamp()
    srd(a, 12, ('in', 'wo'), 640 * 1280)
    srd(a, 16, ('ws', WS_H), ACT_BYTES)
    srd(a, 20, ('in', 'x'), ACT_BYTES)
    srd(a, 8, ('ws', WS_PHIQ), 128 * 32 * 2048)
    srd(a, 44, ('ws', WS_KVF), 32 * 12288)
    xmap(a, 32, 8, 4, 8)
    a("s_mul_i32 s24, s24, 64")
    a("s_mul_i32 s25, s25, 80")
    for k in range(2, 6):
        a(f"v_mov_b32 v{k}, 0")
    def oprol(extra, mid):
        a("v_and_b32 v120, 15, v1")
        a("v_lshrrev_b32 v121, 4, v1")
        a("v_lshlrev_b32 v122, 8, v120")
        a("v_lshl_add_u32 v122, v121, 5, v122")
        a("v_add_u32 v123, 4096, v122")
        a("v_lshlrev_b32 v124, 5, v121")
        a("v_add_u32 v124, 5120, v124")
        a("v_add_u32 v125, s24, v120")
        a("v_mul_u32_u24 v125, 2560, v125")
        a("v_lshl_add_u32 v125, v121, 4, v125")
        for rt in range(1, 4):
            a(f"v_add_u32 v{125+rt}, {rt*16*2560}, v125")
        a(f"v_mul_u32_u24 v129, {OS}, v120")
        a("v_lshl_add_u32 v129, v121, 3, v129")
        a("v_cmp_gt_u32 s[34:35], 16, v1")
        KVB = 16
        a("v_lshlrev_b32 v122, 4, v1")
        a("v_lshlrev_b32 v124, 5, v1")
        a("v_and_b32 v125, 48, v1")
        a("v_lshlrev_b32 v125, 5, v125")
        a("s_lshr_b32 s41, s24, 4")
        def loads(hi):
            a("s_lshl_b32 s36, s26, 2")
            a(f"s_add_u32 s36, s36, {hi}")
            a("s_mul_i32 s37, s36, 12288")
            O = KVB + (hi % 2) * 48
            for fr in range(6):
                vv = 124 if fr < 4 else 125
                a(f"v_add_u32 v123, {fr*2048}, v{vv}")
                a(f"buffer_load_dwordx4 v[{O+fr*8}:{O+fr*8+3}], v123, s[44:47], s37 offen")
                a(f"buffer_load_dwordx4 v[{O+fr*8+4}:{O+fr*8+7}], v123, s[44:47], s37 offen offset:16")
            for rt in range(4):
                a(f"s_add_u32 s38, s41, {rt}")
                a("s_lshl_b32 s38, s38, 5")
                a("s_add_u32 s38, s38, s36")
                a("s_lshl_b32 s38, s38, 11")
                for ks in range(2):
                    r = (hi % 2) * 32 + (rt * 2 + ks) * 4
                    a(f"buffer_load_dwordx4 a[{r}:{r+3}], v122, s[8:11], s38 offen offset:{ks*1024}")
        loads(0); loads(1)
        mid()
        Cn = 132
        for hi in range(4):
            a(f"s_waitcnt vmcnt({(20 + extra) if hi <= 1 else (20 if hi < 3 else 0)})")
            for blk in range(6):
                for jj in range(4):
                    a(f"v_cvt_pk_bf16_f32 v{KVB+(hi%2)*48+blk*8+jj}, v{KVB+(hi%2)*48+blk*8+2*jj}, v{KVB+(hi%2)*48+blk*8+2*jj+1}")
            a.stamp()
            O = KVB + (hi % 2) * 48
            a("s_lshl_b32 s36, s26, 2")
            a(f"s_add_u32 s36, s36, {hi}")
            a("s_mul_i32 s39, s36, 40")
            a("s_nop 0")
            for rt in range(4):
                dn = Cn + 8
                for mt in range(2):
                    for ks in range(2):
                        b = (hi % 2) * 32 + (rt * 2 + ks) * 4
                        cc = Cn + mt * 4
                        srcc = "0" if ks == 0 else f"v[{cc}:{cc+3}]"
                        a(f"v_mfma_f32_16x16x32_bf16 v[{cc}:{cc+3}], v[{O+(mt*2+ks)*8}:{O+(mt*2+ks)*8+3}], a[{b}:{b+3}], {srcc}")
                for ks in range(2):
                    b = (hi % 2) * 32 + (rt * 2 + ks) * 4
                    srcc = "0" if ks == 0 else f"v[{dn}:{dn+3}]"
                    a(f"v_mfma_f32_16x16x32_bf16 v[{dn}:{dn+3}], v[{O+32+ks*8}:{O+32+ks*8+3}], a[{b}:{b+3}], {srcc}")
                a("s_nop 7")
                bf16_round(a, dn + 4, dn)
                a(f"v_add_f32 v{dn+4}, 0x358637bd, v{dn+4}")
                bf16_round(a, dn + 4, dn + 4)
                a(f"v_rcp_f32 v{dn+5}, v{dn+4}")
                a(f"v_add_u32 v130, {rt*16*OS}, v129")
                a("v_add_u32 v130, s39, v130")
                for mt in range(2):
                    cc = Cn + mt * 4
                    for i in range(4):
                        bf16_round(a, cc + i, cc + i)
                    for i in range(4):
                        a(f"v_mul_f32 v{dn+6+i}, v{cc+i}, v{dn+5}")
                    for i in range(4):
                        a(f"v_fma_f32 v{cc+i}, -v{dn+6+i}, v{dn+4}, v{cc+i}")
                    for i in range(4):
                        a(f"v_fma_f32 v{cc+i}, v{cc+i}, v{dn+5}, v{dn+6+i}")
                    a(f"v_cvt_pk_bf16_f32 v{cc}, v{cc}, v{cc+1}")
                    a(f"v_cvt_pk_bf16_f32 v{cc+1}, v{cc+2}, v{cc+3}")
                    if mt == 1:
                        a("s_and_saveexec_b64 s[30:31], s[34:35]")
                    a(f"ds_write_b64 v130, v[{cc}:{cc+1}] offset:{mt*32}")
                    if mt == 1:
                        a("s_mov_b64 exec, s[30:31]")
            if hi + 2 < 4:
                a("s_nop 7")
                loads(hi + 2)

    a("s_cmp_ge_u32 s26, 4")
    a(f"s_cbranch_scc1 {name}_w47")
    oprol(0, lambda: None)
    a("s_waitcnt lgkmcnt(0)")
    ACC, vend = compute_role(a, c)
    a(f"s_branch {name}_epi")
    a.label(f"{name}_w47")
    a("s_sub_u32 s40, s26, 4")
    issue, D = dma_loader_role(a, c, 40, 4, False, True)
    def mid():
        for kc in range(c.S - 1):
            issue(kc)
    oprol(D * (c.S - 1), mid)
    a("s_waitcnt lgkmcnt(0)")
    dma_loader_loop(a, c, issue, D, pre_issued=True)
    a.label(f"{name}_epi")
    a.nst = 20; a.stamp()
    CS = 176
    a("s_barrier")
    a("s_cmp_ge_u32 s26, 4")
    a(f"s_cbranch_scc1 {name}_e2")
    acc_to_lds(a, c, ACC, CS, 0, 'store')
    a.label(f"{name}_e2")
    a("v_lshlrev_b32 v8, 2, v0")
    a("v_mov_b32 v9, 0")
    a("ds_write_b32 v8, v9 offset:16384")
    a("s_waitcnt lgkmcnt(0)")
    a("s_barrier")
    srd(a, 48, ('ws', WS_ST2), 2048 * 8)
    nv = store_tile(a, c, CS, 0, 1280, 640, 512, True)
    a("s_waitcnt vmcnt(0)")
    a.stamp()
    a.label(f"{name}_end")
    a("s_endpgm")
    kernels.append((name, (256,1,1), (512,1,1), c.lds_end, 160, 64, a.text()))


def wsum(a, v):
    for pat in ["quad_perm:[1,0,3,2]", "quad_perm:[2,3,0,1]", "row_half_mirror", "row_mirror"]:
        a("s_nop 1")
        a(f"v_add_f32_dpp v{v}, v{v}, v{v} {pat} row_mask:0xf bank_mask:0xf")
    a("s_nop 1")
    for i in range(4):
        a(f"v_readlane_b32 s{20+i}, v{v}, {16*i}")
    a("s_nop 1")
    a(f"v_mov_b32 v{v}, s20")
    a(f"v_add_f32 v{v}, s21, v{v}")
    a(f"v_add_f32 v{v}, s22, v{v}")
    a(f"v_add_f32 v{v}, s23, v{v}")

def gen_z(name):
    a = Asm()
    a("s_cmp_ge_u32 s2, 512")
    a(f"s_cbranch_scc1 {name}_end")
    load_ptrs(a)
    a("s_waitcnt lgkmcnt(0)")
    srd(a, 8, ('ws', 0x1000000), 32 * 12288)
    srd(a, 12, ('in', 'x'), ACT_BYTES)
    srd(a, 16, ('ws', WS_ST), 2048 * 8)
    a("v_lshrrev_b32 v1, 6, v0")
    a("v_and_b32 v2, 63, v0")
    a("s_lshl_b32 s3, s2, 2")
    a("v_add_u32 v1, s3, v1")
    a("v_mul_u32_u24 v3, 0x500, v1")
    a("v_mul_u32_u24 v4, 20, v2")
    a("v_add_u32 v3, v3, v4")
    a("buffer_load_dwordx4 v[8:11], v3, s[12:15], 0 offen")
    a("buffer_load_dword v12, v3, s[12:15], 0 offen offset:16")
    a("s_lshl_b32 s3, s2, 8")
    a("v_add_u32 v5, s3, v0")
    a("v_lshlrev_b32 v5, 4, v5")
    for k in range(4):
        a(f"v_mov_b32 v{28+k}, 0")
    a("buffer_store_dwordx4 v[28:31], v5, s[8:11], 0 offen")
    srd(a, 24, ('ws', WS_ST2), 2048 * 8)
    a("buffer_store_dwordx4 v[28:31], v5, s[24:27], 0 offen")
    a("s_waitcnt vmcnt(2)")
    for k in range(5):
        a(f"v_lshlrev_b32 v{16+2*k}, 16, v{8+k}")
        a(f"v_and_b32 v{17+2*k}, 0xffff0000, v{8+k}")
    a("v_add_f32 v6, v16, v17")
    for k in range(2, 10):
        a(f"v_add_f32 v6, v6, v{16+k}")
    wsum(a, 6)
    a("v_mul_f32 v6, 0x3acccccd, v6")
    a("v_sub_f32 v7, v16, v6")
    a("v_mul_f32 v13, v7, v7")
    for k in range(1, 10):
        a(f"v_sub_f32 v7, v{16+k}, v6")
        a("v_fmac_f32 v13, v7, v7")
    wsum(a, 13)
    a("v_mul_f32 v13, 0x3acccccd, v13")
    bf16_round(a, 6, 6)
    bf16_round(a, 13, 13)
    a("v_add_f32 v13, 0x3727c5ac, v13")
    bf16_round(a, 13, 13)
    a("v_sqrt_f32 v13, v13")
    a("s_nop 0")
    bf16_round(a, 13, 13)
    a("v_rcp_f32 v7, v13")
    a("v_lshlrev_b32 v1, 3, v1")
    a("v_cmp_eq_u32 vcc, 0, v2")
    a("s_and_saveexec_b64 s[30:31], vcc")
    a("buffer_store_dwordx2 v[6:7], v1, s[16:19], 0 offen")
    a.label(f"{name}_end")
    a("s_endpgm")
    kernels.append((name, (512,1,1), (256,1,1), 0, 32, 0, a.text()))

if __name__ == "__main__":
    if len(sys.argv) > 2 and sys.argv[2] == 'st':
        Asm.STAMP = True
    gen_z("z_kernel")
    gen_k1("k1n_kernel")
    gen_k2("k2n_kernel")
    gen_k4("k4_kernel")
    gen_k5("k5_kernel")
    emit(sys.argv[1])
```
